```python
import torch

def _softmax(x, axis=-1):
    return torch.softmax(x, dim=axis)

def _gelu(x):
    return torch.nn.functional.gelu(x, approximate='tanh')

def _silu(x):
    return torch.nn.functional.silu(x)

def _sigmoid(x):
    return torch.sigmoid(x)

def _layernorm(x, axis=-1, eps=1e-05):
    m = x.mean(dim=axis, keepdim=True)
    v = x.var(dim=axis, keepdim=True, unbiased=False)
    return (x - m) / torch.sqrt(v + eps)

def _scatter_add(tgt, idx, src, axis=0):
    return tgt.clone().index_add_(axis, idx, src)

def _segment_sum(src, seg, n):
    out = torch.zeros((n,) + src.shape[1:], dtype=src.dtype)
    return out.index_add_(0, seg, src)

def _pad(x, pw):
    flat = tuple((v for pair in reversed(pw) for v in pair))
    return torch.nn.functional.pad(x, flat)
kernel_name = 'standalone__mixer_gmlp__prompt'

def setup_inputs():

    _w = lambda a: (lambda t: t.to(torch.bfloat16) if t.is_floating_point() else t)(torch.as_tensor(a))
    B, S, D, F = (1, 2048, 576, 4608)
    Fh = F // 2
    return {'x': _w((lambda *s: torch.randn(*s, dtype=torch.bfloat16) * 0.05)(B, S, D)), 'w_in': _w((lambda *s: torch.randn(*s, dtype=torch.bfloat16) * 0.4)(D, 2 * Fh)), 'w_sp': _w(0.01 * (lambda *s: torch.randn(*s, dtype=torch.bfloat16) * 0.4)(S, S)), 'b_sp': _w(1.0 + 0.01 * (lambda *s: torch.randn(*s, dtype=torch.bfloat16) * 0.05)(S)), 'w_out': _w((lambda *s: torch.randn(*s, dtype=torch.bfloat16) * 0.05)(Fh, D))}

def reference(x, w_in, w_sp, b_sp, w_out):
    B, S, D = x.shape
    F = w_in.shape[-1]
    Fh = F // 2
    z = _gelu(torch.einsum('bsd,df->bsf', x, w_in))
    z1 = z[..., :Fh].clone()
    z2 = _layernorm(z[..., Fh:], axis=-1)
    g = torch.einsum('ts,bsf->btf', w_sp, z2) + b_sp[None, :, None]
    return torch.einsum('bsf,fd->bsd', z1 * g, w_out)
```

```python
import struct, sys, math

def f32bits(x): return struct.unpack("<I", struct.pack("<f", x))[0]

WS_Z1 = 0x0000000
WS_Z2 = 0x1000000
WS_H  = 0x2000000
WS_PS = 0x3000000
ZBYTES = 2048 * 2304 * 2

class Asm:
    def __init__(self):
        self.o = []
    def __call__(self, s):
        for l in s.split("\n"):
            l = l.strip()
            if l: self.o.append(("    " + l) if not l.endswith(":") else l)
    def text(self): return "\n".join(self.o) + "\n"

def vr(b, n=4): return f"v[{b}:{b+n-1}]"

def sched(body, cyclic=True):
    out = []
    q = []
    passes = 2 if cyclic else 1
    for p in range(passes):
        out = []
        for it in body:
            k = it[0]
            if k == 'lds':
                q.append(it[2]); out.append(it[1])
            elif k == 'use':
                idx = max([i for i, t in enumerate(q) if t in it[2]], default=-1)
                if idx >= 0:
                    n = len(q) - 1 - idx
                    n = min(n, 15)
                    out.append(f"s_waitcnt lgkmcnt({n})")
                    q = q[len(q) - n:] if n > 0 else []
                out.append(it[1])
            elif k == 'wait0':
                out.append("s_waitcnt lgkmcnt(0)"); q = []
                if it[1]: out.append(it[1])
            else:
                out.append(it[1])
    return out

def interleave(mf, others, start=0, per=1):
    out = []; oi = 0
    for i, m in enumerate(mf):
        out.append(m)
        if i >= start:
            for _ in range(per):
                if oi < len(others): out.append(others[oi]); oi += 1
    out += others[oi:]
    return out

def srd(A, d, base, nbytes, off=0):
    if off:
        A(f"s_add_u32 s{d}, s{base}, {off:#x}\ns_addc_u32 s{d+1}, s{base+1}, 0")
    else:
        A(f"s_mov_b32 s{d}, s{base}\ns_mov_b32 s{d+1}, s{base+1}")
    A(f"s_mov_b32 s{d+2}, {nbytes:#x}\ns_mov_b32 s{d+3}, 0x20000")

def kernel_head(A, name, nwg):
    A(f".globl {name}\n.p2align 8\n.type {name},@function\n{name}:")
    A(f"s_cmp_ge_u32 s2, {nwg}\ns_cbranch_scc1 {name}_end")

def desc(name, vgpr, sgpr=100):
    v = (vgpr + 7) // 8 * 8
    return f""".p2align 6
.amdhsa_kernel {name}
  .amdhsa_next_free_vgpr {v}
  .amdhsa_next_free_sgpr {sgpr}
  .amdhsa_accum_offset {v}
  .amdhsa_group_segment_fixed_size 0
  .amdhsa_kernarg_size 64
  .amdhsa_user_sgpr_count 2
  .amdhsa_user_sgpr_kernarg_segment_ptr 1
  .amdhsa_system_sgpr_workgroup_id_x 1
.end_amdhsa_kernel
"""

WS_TS = 0x3800000
def stamp(A, cfg, idx):
    if cfg.get("ts"): A(f"s_memrealtime s[{80+2*idx}:{81+2*idx}]")
def stamp_flush(A, cfg, kidx, n, wsreg=10, wave=0, col=0):
    if not cfg.get("ts"): return
    L = f"ts_skip_{kidx}_{len(A.o)}"
    A("s_waitcnt vmcnt(0)")
    stamp(A, cfg, n - 1)
    A(f"s_waitcnt lgkmcnt(0)\ns_cmp_lg_u32 s26, {wave}\ns_cbranch_scc1 {L}")
    srd(A, 76, wsreg, 0x40000, WS_TS + kidx * 0x10000)
    A("s_mov_b64 exec, 1\ns_lshl_b32 s75, s2, 7\nv_mov_b32 v4, s75")
    for i in range(n):
        A(f"v_mov_b32 v8, s{80+2*i}\nv_mov_b32 v9, s{81+2*i}\nbuffer_store_dwordx2 v[8:9], v4, s[76:79], 0 offen offset:{8*(i+col)}\ns_nop 1")
    A(f"{L}:")

def code_prefetch(A, start_label, nlines64, vtmp, vdst, stmp):
    L = f"cp_{len(A.o)}"
    A(f"s_getpc_b64 s[{stmp}:{stmp+1}]\n{L}:")
    A(f"s_add_u32 s{stmp}, s{stmp}, {start_label}-{L}\ns_addc_u32 s{stmp+1}, s{stmp+1}, ({start_label}-{L})>>32")
    A(f"v_lshlrev_b32 v{vtmp}, 7, v1")
    for i in range(nlines64):
        A(f"global_load_dword v{vdst}, v{vtmp}, s[{stmp}:{stmp+1}]")
        if i + 1 < nlines64: A(f"v_add_u32 v{vtmp}, 8192, v{vtmp}")

def dma_groups(A, items, slot_s, aux=""):
    pass

K1_WOFF = 16384
K1_SLOT = 16384 + 20480
K1_NS = 4
GELU_C0 = -2.0 * math.log2(math.e) * math.sqrt(2.0 / math.pi)
GELU_C1 = GELU_C0 * 0.044715

def gelu_ops(regs, T, CV):
    o = []
    n = len(regs)
    for p, x in enumerate(regs): o.append(f"v_pk_mul_f32 v[{T+2*p}:{T+2*p+1}], v[{x}:{x+1}], v[{x}:{x+1}]")
    for p, x in enumerate(regs): o.append(f"v_pk_fma_f32 v[{T+2*p}:{T+2*p+1}], v[{T+2*p}:{T+2*p+1}], s[40:41], v[{CV}:{CV+1}]")
    for p, x in enumerate(regs): o.append(f"v_pk_mul_f32 v[{T+2*p}:{T+2*p+1}], v[{T+2*p}:{T+2*p+1}], v[{x}:{x+1}]")
    for p in range(2 * n): o.append(f"v_exp_f32 v{T+p}, v{T+p}")
    for p in range(n): o.append(f"v_pk_add_f32 v[{T+2*p}:{T+2*p+1}], v[{T+2*p}:{T+2*p+1}], 1.0 op_sel_hi:[1,0]")
    for p in range(2 * n): o.append(f"v_rcp_f32 v{T+p}, v{T+p}")
    for p, x in enumerate(regs): o.append(f"v_pk_mul_f32 v[{x}:{x+1}], v[{x}:{x+1}], v[{T+2*p}:{T+2*p+1}]")
    return o

def gen_k1(A, cfg):
    name = "k1_kernel"
    aux = cfg.get("k1_aux", "")
    kernel_head(A, name, 256)
    A("s_load_dwordx4 s[4:7], s[0:1], 0")
    A("s_load_dwordx4 s[8:11], s[0:1], 48")
    stamp(A, cfg, 0)
    A("""s_and_b32 s20, s2, 7
    s_lshr_b32 s21, s2, 3
    s_lshr_b32 s52, s20, 1
    s_add_u32 s22, s20, s52
    s_and_b32 s22, s22, 1
    s_lshl_b32 s22, s22, 3
    s_and_b32 s53, s21, 7
    s_add_u32 s22, s22, s53
    s_lshr_b32 s54, s21, 3
    s_lshl_b32 s23, s52, 2
    s_add_u32 s23, s23, s54""")
    A("v_and_b32 v1, 63, v0\nv_lshrrev_b32 v2, 6, v0\ns_nop 0\nv_readfirstlane_b32 s26, v2")
    A("v_and_b32 v2, 15, v1\nv_lshrrev_b32 v3, 4, v1")
    A("s_cmp_ge_u32 s26, 8\ns_cbranch_scc1 k1_loader")
    A("s_and_b32 s27, s26, 3\ns_lshr_b32 s24, s26, 2")
    A("v_lshrrev_b32 v4, 2, v2\nv_lshlrev_b32 v4, 3, v4\nv_and_b32 v5, 3, v2\nv_add_u32 v4, v4, v5")
    A("s_cmp_eq_u32 s24, 0\ns_cselect_b64 vcc, -1, 0\ns_lshl_b32 s29, s27, 5\ns_nop 0\nv_cndmask_b32 v4, v2, v4, vcc")
    A("v_add_u32 v4, s29, v4\nv_lshlrev_b32 v4, 7, v4\nv_lshrrev_b32 v5, 1, v2\nv_xor_b32 v5, v5, v3\nv_lshl_add_u32 v4, v5, 4, v4")
    A(f"s_mul_i32 s30, s24, {K1_SLOT}\nv_add_u32 v4, s30, v4\nv_xor_b32 v5, 64, v4")
    A("v_lshrrev_b32 v6, 2, v2\nv_mul_u32_u24 v6, 288, v6\nv_mul_u32_u24 v7, 2432, v3\nv_add_u32 v6, v6, v7\nv_and_b32 v7, 3, v1\nv_lshl_add_u32 v6, v7, 3, v6")
    A(f"s_add_u32 s29, s30, {K1_WOFF}\nv_add_u32 v6, s29, v6")
    ACC = 8; XF = 80; WF = 96
    acc = lambda a, jf: ACC + (a * 9 + jf) * 4
    xf = lambda b, a: XF + (b * 2 + a) * 4
    wf = lambda b, jf: WF + (b * 9 + jf) * 4
    for r in range(ACC, ACC + 72, 2): A(f"v_mov_b64 v[{r}:{r+1}], 0")
    A(f"s_mov_b32 s31, 0\ns_mov_b32 s40, {f32bits(GELU_C1):#x}\ns_mov_b32 s41, {f32bits(GELU_C1):#x}\ns_mov_b32 s42, {f32bits(GELU_C0):#x}")
    A("s_waitcnt lgkmcnt(0)")
    A("s_cmp_eq_u32 s24, 0\ns_cbranch_scc1 k1_c0")
    def prefetch(lo, hi, tagl):
        A("s_load_dwordx2 s[60:61], s[0:1], 16\ns_load_dwordx2 s[62:63], s[0:1], 32")
        A("v_mbcnt_lo_u32_b32 v160, -1, 0\nv_mbcnt_hi_u32_b32 v160, -1, v160")
        A("s_lshl_b32 s58, s2, 2\ns_add_u32 s58, s58, s27\ns_lshl_b32 s59, s58, 13\ns_mul_i32 s58, s58, 2688")
        A("v_lshlrev_b32 v161, 7, v160\nv_min_u32 v162, 20, v160\nv_lshlrev_b32 v162, 7, v162")
        A("s_waitcnt lgkmcnt(0)")
        srd(A, 64, 60, 2048 * 2048 * 2)
        srd(A, 68, 62, 2304 * 576 * 2)
        if lo <= 0 < hi: A("s_mov_b64 exec, 0xffffffff\ns_mov_b32 exec_hi, 0\nbuffer_load_dword v7, v161, s[64:67], s59 offen\ns_mov_b64 exec, -1")
        if lo <= 1 < hi: A("s_mov_b32 exec_lo, 0\nbuffer_load_dword v7, v161, s[64:67], s59 offen\ns_mov_b64 exec, -1")
        if lo <= 2 < hi: A("buffer_load_dword v7, v162, s[68:71], s58 offen")
    if cfg.get("cpf", 1):
        A("s_cmp_lg_u32 s27, 0\ns_cbranch_scc1 k1_nocp")
        code_prefetch(A, "k1_kernel", 3, 160, 7, 60)
        A("k1_nocp:")
    pf_early = cfg.get("k1_pf_early", 0)
    pf_at = cfg.get("k1_pf_at", 1)
    for i in range(9):
        if i == pf_at and pf_early > 0: prefetch(0, pf_early, "e")
        A("s_barrier")
    A("s_branch k1_c1")
    for typ in (0, 1):
        A(f"k1_c{typ}:")
        def xoff(a): return a * 512 if typ == 0 else a * 2048
        def rdx(b, a, sub): return ('lds', f"ds_read_b128 {vr(xf(b,a))}, v{4+sub} offset:{xoff(a)}", f"x{b}{a}")
        def rdw(b, jf, sub):
            return [('lds', f"ds_read_b64_tr_b16 {vr(wf(b,jf)+2*h, 2)}, v6 offset:{sub*9728 + h*1152 + jf*32}", f"w{b}{jf}") for h in range(2)]
        def mf(a, jf, b):
            X, W = vr(xf(b, a)), vr(wf(b, jf))
            a_, b_ = (X, W) if typ == 0 else (W, X)
            return ('use', f"v_mfma_f32_16x16x32_bf16 {vr(acc(a,jf))}, {a_}, {b_}, {vr(acc(a,jf))}", [f"x{b}{a}", f"w{b}{jf}"])
        def reads(b, sub):
            o = [rdx(b, 0, sub), rdx(b, 1, sub)]
            for jf in range(9): o += rdw(b, jf, sub)
            return o
        A("s_barrier")
        if typ == 0: stamp(A, cfg, 1)
        A(f"s_setprio {cfg.get('k1_prio_mm', 1)}")
        for it in reads(0, 0): A(it[1])
        A("s_waitcnt lgkmcnt(0)")
        body = []
        ms = [mf(a, jf, 0) for jf in range(9) for a in range(2)]
        oth = reads(1, 1)
        oth += [('raw', f"s_add_u32 s30, s30, {K1_SLOT}\ns_cmp_eq_u32 s30, {K1_SLOT*K1_NS}\ns_cselect_b32 s30, 0, s30\ns_cselect_b32 s29, {-K1_SLOT*(K1_NS-1)}, s43"),
                ('raw', "v_add_u32 v4, s29, v4"), ('raw', "v_add_u32 v5, s29, v5"), ('raw', "v_add_u32 v6, s29, v6")]
        body += interleave(ms, oth, per=2)
        body += [('wait0', "s_barrier" if typ == 0 else "s_cmp_eq_u32 s31, 8\ns_cbranch_scc1 k1_nb\ns_barrier\nk1_nb:")]
        ms = [mf(a, jf, 1) for jf in range(9) for a in range(2)]
        oth = reads(0, 0) + [('raw', "s_add_u32 s31, s31, 1\ns_cmp_lt_u32 s31, 9")]
        body += interleave(ms, oth, per=2)
        body += [('raw', f"s_cbranch_scc1 k1_loop{typ}")]
        A(f"s_mov_b32 s43, {K1_SLOT}")
        A(f"k1_loop{typ}:")
        for l in sched(body): A(l)
        A("s_waitcnt lgkmcnt(0)\ns_nop 7")
        stamp(A, cfg, 2)
        if typ == 0: A("s_branch k1_epiA")
    CV = 80; T = 84
    def pack_store(sbase, saux):
        for jf in range(9):
            P = 104 + (jf % 4) * 4
            a0, a1 = acc(0, jf), acc(1, jf)
            A(f"v_cvt_pk_bf16_f32 v{P}, v{a0}, v{a0+1}\nv_cvt_pk_bf16_f32 v{P+1}, v{a0+2}, v{a0+3}")
            A(f"v_cvt_pk_bf16_f32 v{P+2}, v{a1}, v{a1+1}\nv_cvt_pk_bf16_f32 v{P+3}, v{a1+2}, v{a1+3}")
            A(f"buffer_store_dwordx4 {vr(P)}, v4, s[32:35], s{sbase} offen offset:{(jf%4)*1024} {saux}")
            if jf % 4 == 3: A(f"s_add_u32 s{sbase}, s{sbase}, 4096")
    A(f"s_setprio 0\nv_mov_b32 v{CV}, s42\nv_mov_b32 v{CV+1}, s42")
    srd(A, 32, 10, ZBYTES, WS_Z1)
    A("s_lshl_b32 s36, s22, 4\ns_add_u32 s36, s36, s23\ns_lshl_b32 s36, s36, 2\ns_add_u32 s36, s36, s27\ns_mul_i32 s36, s36, 9216")
    A("v_lshlrev_b32 v4, 4, v1")
    for jf in range(9):
        for l in gelu_ops([acc(0, jf), acc(0, jf) + 2, acc(1, jf), acc(1, jf) + 2], T, CV): A(l)
        P = 104 + (jf % 4) * 4
        a0, a1 = acc(0, jf), acc(1, jf)
        A(f"v_cvt_pk_bf16_f32 v{P}, v{a0}, v{a0+1}\nv_cvt_pk_bf16_f32 v{P+1}, v{a0+2}, v{a0+3}")
        A(f"v_cvt_pk_bf16_f32 v{P+2}, v{a1}, v{a1+1}\nv_cvt_pk_bf16_f32 v{P+3}, v{a1+2}, v{a1+3}")
        A(f"buffer_store_dwordx4 {vr(P)}, v4, s[32:35], s36 offen offset:{(jf%4)*1024} {cfg.get('z1_st', 'sc1')}")
        if jf % 4 == 3: A("s_add_u32 s36, s36, 4096")
    stamp_flush(A, cfg, 0, 4, wave=4, col=8)
    A("s_endpgm")
    A("k1_epiA:")
    A(f"s_setprio {cfg.get('k1_prio_epi', 2)}\nv_mov_b32 v{CV}, s42\nv_mov_b32 v{CV+1}, s42")
    S1 = 128; S2 = 136
    nbar = 0
    split = cfg.get("k1_split", [3, 3, 3])
    jf = 0
    for n in split:
        for _ in range(n):
            for l in gelu_ops([acc(0, jf), acc(0, jf) + 2, acc(1, jf), acc(1, jf) + 2], T, CV): A(l)
            for a in range(2):
                for h in range(2):
                    x = acc(a, jf) + 2 * h; s1 = S1 + 4 * a + 2 * h; s2 = S2 + 4 * a + 2 * h
                    if jf == 0:
                        A(f"v_mov_b64 v[{s1}:{s1+1}], v[{x}:{x+1}]\nv_pk_mul_f32 v[{s2}:{s2+1}], v[{x}:{x+1}], v[{x}:{x+1}]")
                    else:
                        A(f"v_pk_add_f32 v[{s1}:{s1+1}], v[{s1}:{s1+1}], v[{x}:{x+1}]\nv_pk_fma_f32 v[{s2}:{s2+1}], v[{x}:{x+1}], v[{x}:{x+1}], v[{s2}:{s2+1}]")
            jf += 1
        if jf < 9: A("s_barrier"); nbar += 1
    assert jf == 9
    def dpp_reduce():
        for ror in (8, 4, 2, 1):
            for r in range(S1, S1 + 16):
                A(f"v_add_f32_dpp v{r}, v{r}, v{r} row_ror:{ror} row_mask:0xf bank_mask:0xf")
    A("s_nop 1")
    dpp_reduce()
    srd(A, 32, 10, 16 * 2 * 16 * 512, WS_PS)
    A("s_lshl_b32 s36, s22, 14\ns_lshl_b32 s38, s27, 7\ns_add_u32 s36, s36, s38")
    A("s_lshl_b32 s37, s23, 9\ns_add_u32 s37, s37, s36\ns_add_u32 s38, s37, 8192")
    A("v_lshlrev_b32 v4, 5, v3")
    A("v_cmp_eq_u32 vcc, 0, v2\ns_and_saveexec_b64 s[44:45], vcc")
    for a in range(2):
        A(f"buffer_store_dwordx4 {vr(S1+4*a)}, v4, s[32:35], s37 offen offset:{16*a} sc0 sc1")
        A(f"buffer_store_dwordx4 {vr(S2+4*a)}, v4, s[32:35], s38 offen offset:{16*a} sc0 sc1")
    A("s_mov_b64 exec, s[44:45]")
    stamp(A, cfg, 3)
    srd(A, 48, 8, 256)
    A("s_lshl_b32 s39, s22, 4\ns_add_u32 s38, s36, 8192")
    A("v_lshl_add_u32 v4, v2, 9, v4")
    for _ in range(cfg.get("k1_pubwait", 1)): A("s_barrier"); nbar += 1
    A("s_waitcnt vmcnt(0)\ns_barrier"); nbar += 1
    A("s_cmp_lg_u32 s27, 0\ns_cbranch_scc1 k1_noat")
    A("s_mov_b64 exec, 1\nv_mov_b32 v5, 1\nbuffer_atomic_add v5, off, s[48:51], s39 sc1\ns_mov_b64 exec, -1")
    A("k1_noat:")
    rem = 8 - nbar
    assert rem >= 0
    def stats_loads():
        for a in range(2):
            A(f"buffer_load_dwordx4 {vr(S1+4*a)}, v4, s[32:35], s36 offen offset:{16*a} sc0 sc1")
            A(f"buffer_load_dwordx4 {vr(S2+4*a)}, v4, s[32:35], s38 offen offset:{16*a} sc0 sc1")
    A("s_mov_b32 s47, 0")
    spec = min(cfg.get("k1_spec", 1), rem)
    for i in range(rem):
        if rem - i == spec: A("buffer_load_dword v5, off, s[48:51], s39 sc0 sc1")
        A("s_barrier")
    if spec > 0: A("s_branch k1_poll2")
    A("k1_poll:\nbuffer_load_dword v5, off, s[48:51], s39 sc0 sc1\nk1_poll2:\ns_waitcnt vmcnt(0)\nv_readfirstlane_b32 s46, v5\ns_add_u32 s47, s47, 1\ns_nop 3")
    A("s_cmp_ge_u32 s46, 16\ns_cbranch_scc1 k1_polled\ns_sleep 1\ns_cmp_lt_u32 s47, 0x40000\ns_cbranch_scc1 k1_poll")
    A("k1_polled:")
    stats_loads()
    A("k1_have:")
    A("s_waitcnt vmcnt(0)")
    stamp(A, cfg, 4)
    if cfg.get("k1_pf", 0) == 1: prefetch(pf_early, cfg.get("k1_pf_hi", 2), "l")
    dpp_reduce()
    A(f"s_mov_b32 s40, {f32bits(1.0/2304):#x}\ns_mov_b32 s41, {f32bits(1e-5):#x}")
    for r in range(8): A(f"v_mul_f32 v{S1+r}, s40, v{S1+r}")
    for r in range(8): A(f"v_mul_f32 v{S2+r}, s40, v{S2+r}")
    for r in range(8): A(f"v_fma_f32 v{S2+r}, -v{S1+r}, v{S1+r}, v{S2+r}")
    for r in range(8): A(f"v_max_f32 v{S2+r}, 0, v{S2+r}")
    for r in range(8): A(f"v_add_f32 v{S2+r}, s41, v{S2+r}")
    for r in range(8): A(f"v_rsq_f32 v{S2+r}, v{S2+r}")
    A("s_nop 0")
    for r in range(8): A(f"v_mul_f32 v{S1+r}, v{S1+r}, v{S2+r}")
    srd(A, 32, 10, ZBYTES, WS_Z2)
    A("s_lshl_b32 s36, s23, 6\ns_lshl_b32 s37, s22, 2\ns_add_u32 s36, s36, s37\ns_add_u32 s36, s36, s27\ns_mul_i32 s36, s36, 9216")
    A("v_lshlrev_b32 v4, 4, v1")
    stamp(A, cfg, 5)
    for jf in range(9):
        for a in range(2):
            for h in range(2):
                x = acc(a, jf) + 2 * h; s1 = S1 + 4 * a + 2 * h; s2 = S2 + 4 * a + 2 * h
                A(f"v_pk_fma_f32 v[{x}:{x+1}], v[{x}:{x+1}], v[{s2}:{s2+1}], v[{s1}:{s1+1}] neg_lo:[0,0,1] neg_hi:[0,0,1]")
        P = 104 + (jf % 4) * 4
        a0, a1 = acc(0, jf), acc(1, jf)
        A(f"v_cvt_pk_bf16_f32 v{P}, v{a0}, v{a0+1}\nv_cvt_pk_bf16_f32 v{P+1}, v{a0+2}, v{a0+3}")
        A(f"v_cvt_pk_bf16_f32 v{P+2}, v{a1}, v{a1+1}\nv_cvt_pk_bf16_f32 v{P+3}, v{a1+2}, v{a1+3}")
        A(f"buffer_store_dwordx4 {vr(P)}, v4, s[32:35], s36 offen offset:{(jf%4)*1024} {cfg.get('z2_st', 'sc1')}")
        if jf % 4 == 3: A("s_add_u32 s36, s36, 4096")
    stamp_flush(A, cfg, 0, 7)
    A("s_endpgm")
    A("k1_loader:")
    A(f"s_setprio {cfg.get('k1_prio_ld', 3)}")
    A("s_sub_u32 s27, s26, 8")
    rot = cfg.get("k1_rot", 1)
    if rot == 1:
        A("s_lshl_b32 s55, s54, 1\ns_add_u32 s55, s55, s53\ns_cmp_ge_u32 s55, 9\ns_cselect_b32 s56, 9, 0\ns_sub_u32 s55, s55, s56")
    elif rot == 3:
        A("s_add_u32 s55, s53, s54\ns_mul_i32 s56, s55, 11\ns_lshr_b32 s56, s56, 5\ns_mul_i32 s56, s56, 3\ns_sub_u32 s55, s55, s56\ns_mul_i32 s55, s55, 3")
    elif rot == 2:
        A("s_add_u32 s55, s53, s54\ns_and_b32 s55, s55, 1\ns_mul_i32 s55, s55, 5")
    else:
        A("s_mov_b32 s55, 0")
    A(f"s_lshl_b32 s36, s55, 7\ns_mul_i32 s37, s55, {64*9216}")
    A("v_lshrrev_b32 v4, 3, v1\nv_and_b32 v5, 7, v1")
    A("s_lshl_b32 s28, s22, 7\ns_lshl_b32 s29, s27, 5\ns_add_u32 s28, s28, s29")
    A("s_movk_i32 s29, 1152\nv_add_u32 v6, s28, v4\nv_mul_lo_u32 v6, v6, s29")
    A("v_xor_b32 v7, v3, v5\nv_and_b32 v8, 1, v3\nv_xor_b32 v8, v8, v5")
    for j in range(4):
        A(f"v_xor_b32 v9, {2*j}, v8\nv_lshl_add_u32 v9, v9, 4, v6\nv_add_u32 v{16+j}, {j*(8*1152-1024)}, v9")
    A("s_lshl_b32 s28, s27, 12\ns_mov_b32 m0, s28\ns_mov_b32 s30, 0")
    A("s_waitcnt lgkmcnt(0)")
    srd(A, 12, 4, 2048 * 576 * 2)
    srd(A, 16, 6, 576 * 4608 * 2)
    for j in range(4): A(f"buffer_load_dwordx4 v{16+j}, s[12:15], s36 offen offset:{j*1024} {aux} lds")
    A(f"s_mov_b32 s29, {(2**32 + 151)//152:#x}\ns_mov_b32 s38, {(2**32 + 17)//18:#x}\ns_mul_i32 s39, s23, 288\ns_add_u32 s39, s39, 4608")
    A(f"s_mul_i32 s57, s27, 5120\ns_add_u32 s57, s57, {K1_WOFF}\ns_mul_i32 s58, s27, 320\ns_movk_i32 s59, 9216\ns_movk_i32 s56, 144")
    A("v_mov_b32 v12, 0x7f000000")
    for j in range(5):
        A(f"v_add_u32 v9, {64*j}, v1\nv_add_u32 v9, s58, v9\nv_mul_hi_u32 v10, v9, s29")
        A("v_mul_u32_u24 v11, 152, v10\nv_sub_u32 v9, v9, v11\nv_mul_hi_u32 v11, v9, s38")
        A("v_cmp_gt_u32 vcc, s56, v9\nv_lshl_add_u32 v10, v10, 3, v11\nv_mul_u32_u24 v11, 18, v11\nv_sub_u32 v9, v9, v11")
        A(f"v_mul_lo_u32 v11, v10, s59\nv_lshl_add_u32 v9, v9, 4, v11\ns_sub_u32 s60, s39, {(j%4)*1024}\nv_add_u32 v9, s60, v9")
        A(f"v_cndmask_b32 v9, v12, v9, vcc\nv_cmp_gt_u32 vcc, 64, v10\ns_nop 1\nv_cndmask_b32 v{24+j}, v12, v9, vcc")
        if j % 4 == 0: A(f"s_add_u32 m0, s57, {j*1024}\ns_nop 0")
        A(f"buffer_load_dwordx4 v{24+j}, s[16:19], s37 offen offset:{(j%4)*1024} {aux} lds")
    A("s_mov_b32 s29, s57")
    for j in range(4):
        A(f"v_xor_b32 v9, {4*(j&1)}, v7\nv_lshl_add_u32 v9, v9, 4, v6\nv_add_u32 v{20+j}, {j*(8*1152-1024)}, v9")
    def adv():
        A(f"s_add_u32 s36, s36, 128\ns_add_u32 s37, s37, {64*9216}\ns_cmp_eq_u32 s36, {9*128}\ns_cselect_b32 s36, 0, s36\ns_cselect_b32 s37, 0, s37")
        A(f"s_add_u32 s30, s30, {K1_SLOT}\ns_cmp_eq_u32 s30, {K1_SLOT*K1_NS}\ns_cselect_b32 s30, 0, s30")
    def issue():
        A("s_add_u32 m0, s30, s28\ns_add_u32 s39, s30, s29")
        for j in range(4):
            A(f"buffer_load_dwordx4 v{16+j}, s[12:15], s36 offen offset:{j*1024} {aux} lds")
        for j in range(5):
            if j % 4 == 0: A(f"s_add_u32 m0, s39, {j*1024}\ns_nop 0")
            A(f"buffer_load_dwordx4 v{24+j}, s[16:19], s37 offen offset:{(j%4)*1024} {aux} lds")
        adv()
    adv()
    LA = cfg.get("k1_la", 2)
    assert LA <= 2
    for n in range(1, LA): issue()
    A(f"s_mov_b32 s31, {LA}")
    A("k1_lloop:")
    issue()
    A(f"s_waitcnt vmcnt({9*LA})\ns_barrier")
    A("s_add_u32 s31, s31, 1\ns_cmp_lg_u32 s31, 9\ns_cbranch_scc1 k1_lsame")
    for j in range(4): A(f"v_mov_b32 v{16+j}, v{20+j}")
    for j in range(5): A(f"v_subrev_u32 v{24+j}, 4608, v{24+j}")
    A("k1_lsame:")
    A("s_cmp_lt_u32 s31, 18\ns_cbranch_scc1 k1_lloop")
    if cfg.get("k1_pf", 0) == 2:
        n0 = len(A.o)
        prefetch(pf_early, cfg.get("k1_pf_hi", 2), "ld")
        npf = sum(1 for l in A.o[n0:] if "buffer_load" in l)
    else: npf = 0
    for r in range(LA - 1, -1, -1): A(f"s_waitcnt vmcnt({9*r + npf})\ns_barrier")
    if cfg.get("k1_pf", 0) == 3: prefetch(pf_early, cfg.get("k1_pf_hi", 2), "ld")
    A(f"{name}_end:\ns_endpgm")
    return 168

K2_SLOT = 16384 + 18432
K2_NS = 4
def gen_k2(A, cfg):
    name = "k2_kernel"
    aux = cfg.get("k2_aux", "")
    kernel_head(A, name, 256)
    A("s_load_dwordx4 s[4:7], s[0:1], 16")
    A("s_load_dwordx2 s[62:63], s[0:1], 32")
    stamp(A, cfg, 0)
    A("s_load_dwordx2 s[10:11], s[0:1], 56")
    A("""s_and_b32 s20, s2, 7
    s_lshr_b32 s21, s2, 3
    s_and_b32 s22, s20, 1
    s_lshl_b32 s22, s22, 3
    s_and_b32 s23, s21, 7
    s_add_u32 s22, s22, s23""")
    A("s_lshr_b32 s23, s20, 1\ns_lshl_b32 s23, s23, 2\ns_lshr_b32 s24, s21, 3\ns_add_u32 s23, s23, s24")
    A("v_and_b32 v1, 63, v0\nv_lshrrev_b32 v2, 6, v0\ns_nop 0\nv_readfirstlane_b32 s26, v2")
    A("v_and_b32 v2, 15, v1\nv_lshrrev_b32 v3, 4, v1")
    A("s_waitcnt lgkmcnt(0)")
    A("s_cmp_ge_u32 s26, 4\ns_cbranch_scc1 k2_loader")
    srd(A, 12, 6, 4096)
    srd(A, 16, 10, ZBYTES, WS_Z1)
    ACC = 16; ZF = 88; WF = 160; Z1 = 176
    acc = lambda it, jf: ACC + (it * 9 + jf) * 4
    zf = lambda b, jf: ZF + (b * 9 + jf) * 4
    wf = lambda b, it: WF + (b * 2 + it) * 4
    A("s_lshl_b32 s27, s22, 7\ns_lshl_b32 s28, s26, 5\ns_add_u32 s27, s27, s28\nv_add_u32 v4, s27, v2\nv_lshlrev_b32 v4, 1, v4")
    A("buffer_load_ushort v8, v4, s[12:15], 0 offen\nbuffer_load_ushort v9, v4, s[12:15], 0 offen offset:32")
    A("v_add_u32 v4, s28, v2\nv_lshlrev_b32 v4, 7, v4\nv_lshrrev_b32 v5, 1, v2\nv_xor_b32 v5, v5, v3\nv_lshl_add_u32 v6, v5, 4, v4\nv_xor_b32 v7, 64, v6")
    A("v_lshlrev_b32 v10, 4, v1\nv_add_u32 v11, 16384, v10")
    A("v_mov_b32 v12, v6\nv_mov_b32 v13, v7\nv_mov_b32 v14, v11")
    A("s_waitcnt vmcnt(0)\nv_lshlrev_b32 v8, 16, v8\nv_lshlrev_b32 v9, 16, v9")
    if cfg.get("k2_pf", 1):
        srd(A, 68, 62, 2304 * 576 * 2)
        A("s_lshl_b32 s58, s2, 2\ns_add_u32 s58, s58, s26\ns_mul_i32 s58, s58, 2688\nv_min_u32 v15, 20, v1\nv_lshlrev_b32 v15, 7, v15")
        A("buffer_load_dword v15, v15, s[68:71], s58 offen")
    for it in range(2):
        for r in range(36): A(f"v_mov_b32 v{acc(it,0)+r}, v{8+it}")
    A("s_lshl_b32 s27, s22, 4\ns_add_u32 s27, s27, s23\ns_lshl_b32 s27, s27, 2\ns_add_u32 s27, s27, s26\ns_mul_i32 s27, s27, 9216")
    A("s_mov_b32 s30, 0\ns_mov_b32 s31, 0")
    def rdw(b, it, sub): return ('lds', f"ds_read_b128 {vr(wf(b,it))}, v{12+sub} offset:{it*2048}", f"w{b}{it}")
    def rdz(b, jf, sub): return ('lds', f"ds_read_b128 {vr(zf(b,jf))}, v14 offset:{(sub*9+jf)*1024}", f"z{b}{jf}")
    def mf(it, jf, b): return ('use', f"v_mfma_f32_16x16x32_bf16 {vr(acc(it,jf))}, {vr(zf(b,jf))}, {vr(wf(b,it))}, {vr(acc(it,jf))}", [f"w{b}{it}", f"z{b}{jf}"])
    A("s_barrier")
    stamp(A, cfg, 1)
    if cfg.get("ts"): A("s_memtime s[88:89]")
    for it in range(2): A(rdw(0, it, 0)[1])
    for jf in range(9): A(rdz(0, jf, 0)[1])
    for jf in range(9):
        A(f"buffer_load_dwordx4 {vr(Z1+4*jf)}, v10, s[16:19], s27 offen offset:{(jf%4)*1024}")
        if jf % 4 == 3: A("s_add_u32 s27, s27, 4096")
    A("s_waitcnt lgkmcnt(0)")
    body = []
    ms = [mf(it, jf, 0) for jf in range(9) for it in range(2)]
    oth = [rdw(1, 0, 1), rdw(1, 1, 1)] + [rdz(1, jf, 1) for jf in range(9)]
    oth += [('raw', f"s_add_u32 s30, s30, {K2_SLOT}\ns_cmp_eq_u32 s30, {K2_SLOT*K2_NS}\ns_cselect_b32 s30, 0, s30"),
            ('raw', "v_add_u32 v12, s30, v6"), ('raw', "v_add_u32 v13, s30, v7"), ('raw', "v_add_u32 v14, s30, v11")]
    body += interleave(ms, oth)
    body += [('wait0', "s_barrier")]
    ms = [mf(it, jf, 1) for jf in range(9) for it in range(2)]
    oth = [rdw(0, 0, 0), rdw(0, 1, 0)] + [rdz(0, jf, 0) for jf in range(9)]
    oth += [('raw', "s_add_u32 s31, s31, 1\ns_cmp_lt_u32 s31, 32")]
    body += interleave(ms, oth)
    body += [('raw', "s_cbranch_scc1 k2_loop")]
    A("k2_loop:")
    for l in sched(body):
        if cfg.get("k2_nomfma") and l.startswith("v_mfma"): continue
        if cfg.get("k2_nolds") and l.startswith("ds_read"): continue
        A(l)
    A("s_waitcnt lgkmcnt(0) vmcnt(0)\ns_nop 7")
    stamp(A, cfg, 2)
    if cfg.get("ts"): A("s_memtime s[90:91]")
    srd(A, 32, 10, ZBYTES, WS_H)
    A("s_lshl_b32 s27, s22, 3\ns_lshl_b32 s28, s26, 1\ns_add_u32 s27, s27, s28\ns_lshl_b32 s27, s27, 4\ns_add_u32 s27, s27, s23\ns_mul_i32 s27, s27, 4608")
    A("s_add_u32 s28, s27, 4096\nv_lshlrev_b32 v11, 3, v1")
    T = 88
    n = 0
    for it in range(2):
        for jf in range(9):
            z = Z1 + 4 * jf + 2 * it; a = acc(it, jf); t = T + (jf % 2) * 4
            A(f"v_lshlrev_b32 v{t}, 16, v{z}\nv_and_b32 v{t+1}, 0xffff0000, v{z}\nv_lshlrev_b32 v{t+2}, 16, v{z+1}\nv_and_b32 v{t+3}, 0xffff0000, v{z+1}")
            A(f"v_pk_mul_f32 v[{a}:{a+1}], v[{a}:{a+1}], v[{t}:{t+1}]\nv_pk_mul_f32 v[{a+2}:{a+3}], v[{a+2}:{a+3}], v[{t+2}:{t+3}]")
            P = 96 + (n % 4) * 4 + (jf % 2) * 2
            A(f"v_cvt_pk_bf16_f32 v{P}, v{a}, v{a+1}\nv_cvt_pk_bf16_f32 v{P+1}, v{a+2}, v{a+3}")
            if jf % 2 == 1:
                A(f"buffer_store_dwordx4 {vr(P-2)}, v10, s[32:35], s27 offen offset:{(jf//2)*1024} {cfg.get('h_st','sc1')}"); n += 1
            elif jf == 8:
                A(f"buffer_store_dwordx2 {vr(P,2)}, v11, s[32:35], s28 offen {cfg.get('h_st','sc1')}"); n += 1
        if it == 0: A(f"s_add_u32 s27, s27, {16*4608}\ns_add_u32 s28, s28, {16*4608}")
    stamp(A, cfg, 3)
    stamp_flush(A, cfg, 1, 7)
    A("s_endpgm")
    A("k2_loader:")
    stamp(A, cfg, 1)
    srd(A, 12, 4, 2048 * 2048 * 2)
    srd(A, 16, 10, ZBYTES, WS_Z2)
    A("s_sub_u32 s27, s26, 4")
    A("v_lshrrev_b32 v4, 3, v1\nv_and_b32 v5, 7, v1")
    A("s_lshl_b32 s28, s22, 7\ns_lshl_b32 s29, s27, 6\ns_add_u32 s28, s28, s29")
    for j in range(8):
        A(f"v_add_u32 v6, {8*j}, v4\nv_lshrrev_b32 v7, 1, v6\nv_and_b32 v7, 7, v7\nv_xor_b32 v7, v7, v5\nv_lshlrev_b32 v7, 4, v7")
        A("v_add_u32 v6, s28, v6\nv_lshlrev_b32 v6, 12, v6\nv_add_u32 v6, v6, v7")
        A(f"v_subrev_u32 v{16+j}, {(j%4)*1024}, v6" if j % 4 else f"v_mov_b32 v{16+j}, v6")
    A(f"s_mul_i32 s28, s23, {32*18432}\ns_mul_i32 s29, s27, 9216\ns_add_u32 s28, s28, s29")
    A("v_lshlrev_b32 v6, 4, v1\nv_add_u32 v24, s28, v6\nv_add_u32 v25, 4096, v24\nv_add_u32 v26, 8192, v24")
    A("s_lshl_b32 s28, s27, 13\ns_add_u32 s29, s29, 16384")
    A("s_mov_b32 s30, 0\ns_mov_b32 s31, 0\ns_mov_b32 s36, 0\ns_mov_b32 s37, 0")
    if cfg.get("k2_half", 1):
        A(f"s_lshr_b32 s36, s20, 1\ns_add_u32 s36, s36, s20\ns_and_b32 s36, s36, 1\ns_mul_i32 s37, s36, {16*18432}\ns_lshl_b32 s36, s36, 11")
    def issue():
        A("s_add_u32 s38, s30, s28\ns_add_u32 s39, s30, s29")
        for j in range(8):
            if j % 4 == 0: A(f"s_add_u32 m0, s38, {j*1024}\ns_nop 0")
            if not cfg.get("k2_nodma"): A(f"buffer_load_dwordx4 v{16+j}, s[12:15], s36 offen offset:{(j%4)*1024} {aux} lds")
        for j in range(9):
            if j % 4 == 0: A(f"s_add_u32 m0, s39, {j*1024}\ns_nop 0")
            if not cfg.get("k2_nodma"): A(f"buffer_load_dwordx4 v{24+j//4}, s[16:19], s37 offen offset:{(j%4)*1024} lds")
        A("s_add_u32 s36, s36, 128\ns_add_u32 s37, s37, 18432")
        A(f"s_cmp_ge_u32 s36, {cfg.get('k2_wrap', 32)*128}\ns_cselect_b32 s36, 0, s36\ns_cselect_b32 s37, 0, s37")
        A(f"s_add_u32 s30, s30, {K2_SLOT}\ns_cmp_eq_u32 s30, {K2_SLOT*K2_NS}\ns_cselect_b32 s30, 0, s30")
    stamp(A, cfg, 2)
    A("k2_lpro:")
    issue()
    A("s_add_u32 s31, s31, 1\ns_cmp_lt_u32 s31, 4\ns_cbranch_scc1 k2_lpro")
    stamp(A, cfg, 3)
    if cfg.get("ts"): A("s_waitcnt vmcnt(51)")
    stamp(A, cfg, 4)
    A("s_waitcnt vmcnt(51)\ns_barrier")
    A("k2_lloop:")
    A("s_waitcnt vmcnt(34)\ns_barrier")
    issue()
    A("s_add_u32 s31, s31, 1\ns_cmp_lt_u32 s31, 32\ns_cbranch_scc1 k2_lloop")
    A("s_waitcnt vmcnt(34)\ns_barrier\ns_waitcnt vmcnt(17)\ns_barrier\ns_waitcnt vmcnt(0)\ns_barrier\ns_barrier")
    if cfg.get("cpf", 1): code_prefetch(A, "k3_kernel", 1, 4, 5, 60)
    stamp_flush(A, cfg, 1, 6, wave=4, col=8)
    A(f"{name}_end:\ns_endpgm")
    return 212

K3_A = 23552
K3_SLOT = K3_A + 18432
K3_NS = 3
def gen_k3(A, cfg):
    name = "k3_kernel"
    aux = cfg.get("k3_aux", "")
    kernel_head(A, name, 240)
    A("s_load_dwordx4 s[4:7], s[0:1], 32")
    stamp(A, cfg, 0)
    A("s_load_dwordx2 s[10:11], s[0:1], 56")
    A("s_and_b32 s20, s2, 7\ns_lshr_b32 s21, s2, 3\ns_mul_i32 s20, s20, 30\ns_add_u32 s20, s20, s21")
    A(f"s_cmp_ge_u32 s20, 234\ns_cbranch_scc1 {name}_end")
    A(f"s_mul_i32 s22, s20, {(65536+8)//9}\ns_lshr_b32 s22, s22, 16\ns_mul_i32 s23, s22, 9\ns_sub_u32 s23, s20, s23")
    A("v_and_b32 v1, 63, v0\nv_lshrrev_b32 v2, 6, v0\ns_nop 0\nv_readfirstlane_b32 s26, v2")
    A("v_and_b32 v2, 15, v1\nv_lshrrev_b32 v3, 4, v1")
    A("s_waitcnt lgkmcnt(0)")
    A("s_cmp_ge_u32 s26, 4\ns_cbranch_scc1 k3_loader")
    ACC = 16; HF = 40; WF = 136
    acc = lambda ts: ACC + 4 * ts
    hf = lambda p, ts: HF + (p * 5 + ts) * 4 if p < 4 else HF + 80 + ts * 2
    wf = lambda p: WF + 4 * p
    A("v_lshlrev_b32 v6, 4, v1\nv_lshlrev_b32 v7, 3, v1")
    A("v_lshrrev_b32 v4, 2, v2\nv_lshl_add_u32 v4, v3, 2, v4")
    A("v_lshrrev_b32 v5, 1, v4\nv_and_b32 v5, 3, v5\nv_xor_b32 v5, s26, v5\nv_lshlrev_b32 v5, 5, v5")
    A(f"v_lshl_add_u32 v4, v4, 7, v5\nv_and_b32 v5, 3, v1\nv_lshl_add_u32 v4, v5, 3, v4\nv_add_u32 v8, {K3_A}, v4")
    A("v_mov_b32 v12, v6\nv_mov_b32 v13, v7\nv_mov_b32 v14, v8")
    for r in range(ACC, ACC + 20, 2): A(f"v_mov_b64 v[{r}:{r+1}], 0")
    A("s_mov_b32 s30, 0\ns_mov_b32 s31, 0")
    body = [('raw', "s_barrier")]
    rd = []
    for p in range(5):
        if p < 4:
            for h in range(2):
                rd.append(('lds', f"ds_read_b64_tr_b16 {vr(wf(p)+2*h,2)}, v14 offset:{(32*p+16*h)*128}", f"w{p}"))
            for ts in range(5): rd.append(('lds', f"ds_read_b128 {vr(hf(p,ts))}, v12 offset:{ts*4608+p*1024}", f"h{p}{ts}"))
        else:
            rd.append(('lds', f"ds_read_b64_tr_b16 {vr(wf(4),2)}, v14 offset:{128*128}", "w4"))
            for ts in range(5): rd.append(('lds', f"ds_read_b64 {vr(hf(4,ts),2)}, v13 offset:{ts*4608+4096}", f"h4{ts}"))
    ms = []
    for p in range(5):
        for ts in range(5):
            if p < 4: ms.append(('use', f"v_mfma_f32_16x16x32_bf16 {vr(acc(ts))}, {vr(wf(p))}, {vr(hf(p,ts))}, {vr(acc(ts))}", [f"w{p}", f"h{p}{ts}"]))
            else: ms.append(('use', f"v_mfma_f32_16x16x16_bf16 {vr(acc(ts))}, {vr(wf(4),2)}, {vr(hf(4,ts),2)}, {vr(acc(ts))}", ["w4", f"h4{ts}"]))
    body += rd[:14]
    upd = [('raw', f"s_add_u32 s30, s30, {K3_SLOT}\ns_cmp_eq_u32 s30, {K3_SLOT*K3_NS}\ns_cselect_b32 s30, 0, s30"),
           ('raw', "v_add_u32 v12, s30, v6"), ('raw', "v_add_u32 v13, s30, v7"), ('raw', "v_add_u32 v14, s30, v8"),
           ('raw', "s_add_u32 s31, s31, 1\ns_cmp_lt_u32 s31, 16")]
    body += interleave(ms, rd[14:] + upd, per=2)
    body += [('raw', "s_cbranch_scc1 k3_loop")]
    stamp(A, cfg, 1)
    A("s_waitcnt lgkmcnt(0)")
    A("k3_loop:")
    for l in sched(body): A(l)
    A("s_nop 7\ns_nop 3")
    stamp(A, cfg, 2)
    srd(A, 32, 6, 2048 * 576 * 2)
    A("s_mul_i32 s27, s22, 80\nv_add_u32 v4, s27, v2\ns_movk_i32 s27, 1152\nv_mul_lo_u32 v4, v4, s27")
    A("s_lshl_b32 s27, s23, 7\ns_lshl_b32 s28, s26, 5\ns_add_u32 s27, s27, s28\nv_lshl_add_u32 v4, v3, 3, v4\nv_add_u32 v4, s27, v4")
    A("s_mov_b32 s27, 0")
    for ts in range(5):
        a = acc(ts); P = 40 + 2 * ts
        A(f"v_cvt_pk_bf16_f32 v{P}, v{a}, v{a+1}\nv_cvt_pk_bf16_f32 v{P+1}, v{a+2}, v{a+3}")
        A(f"buffer_store_dwordx2 {vr(P,2)}, v4, s[32:35], s27 offen")
        A(f"s_add_u32 s27, s27, {16*1152}")
    stamp_flush(A, cfg, 2, 4)
    if cfg.get("ts") and cfg.get("spin"):
        k, col = cfg["spin"]
        A("s_cmp_lg_u32 s2, 0\ns_cbranch_scc1 k3_nospin\ns_cmp_lg_u32 s26, 0\ns_cbranch_scc1 k3_nospin")
        A("s_waitcnt vmcnt(0)\ns_mov_b64 exec, 1")
        srd(A, 76, 10, 0x40000, WS_TS)
        A(f"s_mov_b32 s60, {k*0x10000 + col*8}\nbuffer_load_dword v6, off, s[76:79], s60 sc0 sc1\ns_waitcnt vmcnt(0)\nv_readfirstlane_b32 s61, v6\ns_mov_b32 s64, 0")
        A("k3_spin:\ns_memrealtime s[62:63]\ns_waitcnt lgkmcnt(0)\ns_add_u32 s64, s64, 1\ns_cmp_gt_u32 s64, 0x100000\ns_cbranch_scc1 k3_nospin\ns_sub_u32 s62, s62, s61\ns_cmp_lt_u32 s62, 10000\ns_cbranch_scc1 k3_spin")
        A("k3_nospin:")
    if cfg.get("ts") and cfg.get("dbgout"):
        wg = cfg["dbgout"] - 1
        A(f"s_cmp_lg_u32 s2, {wg}\ns_cbranch_scc1 k3_nodbg\ns_cmp_lg_u32 s26, 0\ns_cbranch_scc1 k3_nodbg")
        A("s_load_dwordx2 s[60:61], s[0:1], 48\ns_waitcnt vmcnt(0) lgkmcnt(0)\ns_mov_b64 exec, 0xffff")
        srd(A, 76, 10, 0x40000, WS_TS)
        srd(A, 64, 60, 256)
        A("v_mbcnt_lo_u32_b32 v4, -1, 0\nv_lshlrev_b32 v5, 3, v4")
        A(f"v_cmp_lt_u32 vcc, 6, v4\nv_add_u32 v6, {0x10000 - 56}, v5\ns_nop 1\nv_cndmask_b32 v5, v5, v6, vcc")
        A(f"v_cmp_lt_u32 vcc, 10, v4\nv_add_u32 v6, {0x10000 - 32}, v5\ns_nop 1\nv_cndmask_b32 v5, v5, v6, vcc")
        A(f"v_cmp_eq_u32 vcc, 15, v4\nv_mov_b32 v6, 88\ns_nop 1\nv_cndmask_b32 v5, v5, v6, vcc")
        A(f"v_add_u32 v5, {wg*128}, v5\nbuffer_load_dword v6, v5, s[76:79], 0 offen sc0 sc1\nv_lshlrev_b32 v4, 2, v4\ns_waitcnt vmcnt(0)")
        A("buffer_store_dword v6, v4, s[64:67], 0 offen")
        A("k3_nodbg:")
    A("s_endpgm")
    A("k3_loader:")
    srd(A, 12, 10, ZBYTES, WS_H)
    srd(A, 16, 4, 2304 * 576 * 2)
    A("s_sub_u32 s27, s26, 4")
    A("s_mul_i32 s28, s27, 768")
    A(f"s_mov_b32 s29, {(2**32 + 287)//288:#x}\ns_mov_b32 s36, {16*4608}\ns_mul_i32 s37, s22, {5*16*4608}")
    A("s_movk_i32 s38, 288\ns_movk_i32 s39, 1440")
    for j in range(12):
        A(f"v_add_u32 v6, {64*j}, v1\nv_add_u32 v6, s28, v6\nv_mul_hi_u32 v7, v6, s29\nv_mul_lo_u32 v8, v7, s38\nv_sub_u32 v8, v6, v8")
        A("v_mul_lo_u32 v7, v7, s36\nv_lshl_add_u32 v7, v8, 4, v7\nv_add_u32 v7, s37, v7")
        if j % 4: A(f"v_subrev_u32 v7, {(j%4)*1024}, v7")
        A(f"v_cmp_gt_u32 vcc, s39, v6\nv_mov_b32 v9, 0x7f000000\ns_nop 0\nv_cndmask_b32 v{16+j}, v9, v7, vcc")
    A("v_lshrrev_b32 v4, 3, v1\nv_and_b32 v5, 7, v1\nv_and_b32 v6, 6, v4\nv_xor_b32 v5, v5, v6\nv_lshlrev_b32 v5, 4, v5")
    A("s_mul_i32 s28, s27, 72\nv_add_u32 v4, s28, v4\ns_movk_i32 s28, 1152\nv_mul_lo_u32 v4, v4, s28\nv_add_u32 v4, v4, v5")
    A("s_lshl_b32 s28, s23, 7\nv_add_u32 v4, s28, v4")
    for j in range(9):
        A(f"v_add_u32 v{28+j}, {j*8*1152 - (j%4)*1024}, v4")
    A("s_mul_i32 s28, s27, 12288")
    A(f"s_mul_i32 s29, s27, 9216\ns_add_u32 s29, s29, {K3_A}")
    A("s_mov_b32 s30, 0\ns_mov_b32 s31, 0\ns_mov_b32 s36, 0\ns_mov_b32 s37, 0")
    if cfg.get("k3_rot", 0):
        A("s_mul_i32 s36, s23, 7\ns_lshr_b32 s36, s36, 2\ns_mul_i32 s37, s22, 5\ns_add_u32 s36, s36, s37\ns_and_b32 s36, s36, 15")
        A(f"s_mul_i32 s37, s36, {144*1152}\ns_mul_i32 s36, s36, 4608")
    A("s_cmp_eq_u32 s27, 1\ns_cbranch_scc1 k3_l1")
    for lw in range(2):
        nA = 12 if lw == 0 else 11
        per = nA + 9
        A(f"k3_l{lw}:")
        def issue():
            A("s_add_u32 s38, s30, s28\ns_add_u32 s39, s30, s29")
            for j in range(nA):
                if j % 4 == 0: A(f"s_add_u32 m0, s38, {j*1024}\ns_nop 0")
                A(f"buffer_load_dwordx4 v{16+j}, s[12:15], s36 offen offset:{(j%4)*1024} lds")
            for j in range(9):
                if j % 4 == 0: A(f"s_add_u32 m0, s39, {j*1024}\ns_nop 0")
                A(f"buffer_load_dwordx4 v{28+j}, s[16:19], s37 offen offset:{(j%4)*1024} {aux} lds")
            A(f"s_add_u32 s36, s36, 4608\ns_add_u32 s37, s37, {144*1152}\ns_cmp_eq_u32 s36, {16*4608}\ns_cselect_b32 s36, 0, s36\ns_cselect_b32 s37, 0, s37")
            A(f"s_add_u32 s30, s30, {K3_SLOT}\ns_cmp_eq_u32 s30, {K3_SLOT*K3_NS}\ns_cselect_b32 s30, 0, s30")
        A(f"k3_lpro{lw}:")
        issue()
        A(f"s_add_u32 s31, s31, 1\ns_cmp_lt_u32 s31, 3\ns_cbranch_scc1 k3_lpro{lw}")
        A(f"s_waitcnt vmcnt({2*per})\ns_barrier")
        A(f"k3_lloop{lw}:")
        A(f"s_waitcnt vmcnt({per})\ns_barrier")
        issue()
        A(f"s_add_u32 s31, s31, 1\ns_cmp_lt_u32 s31, 16\ns_cbranch_scc1 k3_lloop{lw}")
        A(f"s_waitcnt vmcnt({per})\ns_barrier\ns_waitcnt vmcnt(0)\ns_barrier")
        A("s_endpgm")
    A(f"{name}_end:\ns_endpgm")
    return 160

def build(cfg=None):
    cfg = cfg or {}
    A = Asm()
    head = open("standalone__mixer_gmlp__prompt.s.ref").read().split("\n")
    head = [l for l in head if l.startswith(";") and "@launch" not in l and "Override" not in l and "grid=ceil" not in l]
    hdr = "\n".join(head) + "\n"
    hdr += f"; @launch kernel=k1_kernel grid=(256,1,1) block=(768,1,1) lds={K1_SLOT*K1_NS}\n"
    hdr += f"; @launch kernel=k2_kernel grid=(256,1,1) block=(384,1,1) lds={K2_SLOT*K2_NS}\n"
    hdr += f"; @launch kernel=k3_kernel grid=(240,1,1) block=(384,1,1) lds={K3_SLOT*K3_NS}\n"
    hdr += '.amdgcn_target "amdgcn-amd-amdhsa--gfx950"\n.text\n'
    v1 = gen_k1(A, cfg); v2 = gen_k2(A, cfg); v3 = gen_k3(A, cfg)
    A(".p2align 8\ntext_pad:\n.fill 2048, 4, 0xBF810000")
    tail = '.section .rodata,"a"\n' + desc("k1_kernel", v1) + desc("k2_kernel", v2) + desc("k3_kernel", v3)
    return hdr + A.text() + tail

if __name__ == "__main__":
    import json
    cfg = json.loads(sys.argv[2]) if len(sys.argv) > 2 else {}
    out = sys.argv[1] if len(sys.argv) > 1 else "standalone__mixer_gmlp__prompt.s"
    open(out, "w").write(build(cfg))
```

```python
import struct, sys, math
from gen_v3 import Asm, vr, sched, interleave, f32bits, gelu_ops, GELU_C0, GELU_C1

WS_Z1 = 0x0000000
WS_Z2 = 0x1000000
WS_H  = 0x2000000
WS_PS = 0x3000000
WS_FL = 0x3100000
WS_TS = 0x3800000
ZBYTES = 2048 * 2304 * 2
SLOT = 36864; NS = 4; WOFF = 16384
G3_A = 24576; G3_SLOT = G3_A + 20480; G3_NS = 3
NAME = "standalone__mixer_gmlp__prompt_kernel"
P_X, P_WIN, P_WSP, P_B, P_WO, P_OUT, P_DBG, P_WS = 4, 6, 8, 10, 12, 14, 16, 18

def srd(A, d, base, nbytes, off=0):
    if off: A(f"s_add_u32 s{d}, s{base}, {off:#x}\ns_addc_u32 s{d+1}, s{base+1}, 0")
    else: A(f"s_mov_b32 s{d}, s{base}\ns_mov_b32 s{d+1}, s{base+1}")
    A(f"s_mov_b32 s{d+2}, {nbytes:#x}\ns_mov_b32 s{d+3}, 0x20000")

def build(cfg=None):
    cfg = cfg or {}
    A = Asm()
    ts = cfg.get("ts")
    def stamp(i):
        if ts: A(f"s_memrealtime s[{80+2*i}:{81+2*i}]")
    def flush(role, n, wave):
        if not ts: return
        L = f"ts_skip_{len(A.o)}"
        A("s_waitcnt vmcnt(0)")
        stamp(n - 1)
        A(f"s_waitcnt lgkmcnt(0)\ns_cmp_lg_u32 s26, {wave}\ns_cbranch_scc1 {L}")
        srd(A, 76, P_WS, 0x40000, WS_TS + role * 0x10000)
        A("s_mov_b64 exec, 1\ns_lshl_b32 s75, s2, 7\nv_mov_b32 v4, s75")
        for i in range(n):
            A(f"v_mov_b32 v8, s{80+2*i}\nv_mov_b32 v9, s{81+2*i}\nbuffer_store_dwordx2 v[8:9], v4, s[76:79], 0 offen offset:{8*i}\ns_nop 1")
        A(f"{L}:")
    def get_nonce(tag, vt):
        A(f"s_mov_b32 s73, 0\ns_movk_i32 s74, 252\nnon_{tag}:")
        A(f"buffer_load_dword v{vt}, off, s[48:51], s74 @SC@\ns_waitcnt vmcnt(0)\nv_readfirstlane_b32 s72, v{vt}\ns_add_u32 s73, s73, 1\ns_nop 3")
        A(f"s_cmp_lg_u32 s72, 0\ns_cbranch_scc1 nok_{tag}\ns_sleep @SL@\ns_cmp_lt_u32 s73, 0x40000\ns_cbranch_scc1 non_{tag}\nnok_{tag}:")
    aux = cfg.get("k1_aux", "")
    haux = cfg.get("haux", "sc1")

    A(f".globl {NAME}\n.p2align 8\n.type {NAME},@function\n{NAME}:")
    A("s_cmp_ge_u32 s2, 256\ns_cbranch_scc1 k_end")
    A("s_load_dwordx16 s[4:19], s[0:1], 0")
    stamp(0)
    A("""s_and_b32 s20, s2, 7
    s_lshr_b32 s21, s2, 3
    s_lshr_b32 s52, s20, 1
    s_and_b32 s22, s20, 1
    s_lshl_b32 s22, s22, 3
    s_and_b32 s53, s21, 7
    s_add_u32 s22, s22, s53
    s_lshr_b32 s54, s21, 3
    s_lshl_b32 s23, s52, 2
    s_add_u32 s23, s23, s54""")
    A("v_and_b32 v1, 63, v0\nv_lshrrev_b32 v2, 6, v0\ns_nop 0\nv_readfirstlane_b32 s26, v2")
    A("v_and_b32 v2, 15, v1\nv_lshrrev_b32 v3, 4, v1")
    A("s_cmp_ge_u32 s26, 8\ns_cbranch_scc1 k_loader")
    A("s_and_b32 s27, s26, 3\ns_lshr_b32 s24, s26, 2")
    A("v_lshrrev_b32 v4, 2, v2\nv_lshlrev_b32 v4, 3, v4\nv_and_b32 v5, 3, v2\nv_add_u32 v4, v4, v5")
    A("s_cmp_eq_u32 s24, 0\ns_cselect_b64 vcc, -1, 0\ns_lshl_b32 s29, s27, 5\ns_nop 0\nv_cndmask_b32 v4, v2, v4, vcc")
    A("v_add_u32 v4, s29, v4\nv_lshlrev_b32 v4, 7, v4\nv_lshrrev_b32 v5, 1, v2\nv_xor_b32 v5, v5, v3\nv_lshl_add_u32 v4, v5, 4, v4")
    A(f"s_mul_i32 s30, s24, {SLOT}\nv_add_u32 v4, s30, v4\nv_xor_b32 v5, 64, v4")
    A("v_lshrrev_b32 v6, 2, v2\nv_mul_u32_u24 v6, 288, v6\nv_mul_u32_u24 v7, 2432, v3\nv_add_u32 v6, v6, v7\nv_and_b32 v7, 3, v1\nv_lshl_add_u32 v6, v7, 3, v6")
    A(f"s_add_u32 s29, s30, {WOFF}\nv_add_u32 v6, s29, v6")
    ACC = 8; XF = 80; WF = 96
    acc = lambda a, jf: ACC + (a * 9 + jf) * 4
    xf = lambda b, a: XF + (b * 2 + a) * 4
    wf = lambda b, jf: WF + (b * 9 + jf) * 4
    for r in range(ACC, ACC + 72, 2): A(f"v_mov_b64 v[{r}:{r+1}], 0")
    A(f"s_mov_b32 s31, 0\ns_mov_b32 s40, {f32bits(GELU_C1):#x}\ns_mov_b32 s41, {f32bits(GELU_C1):#x}\ns_mov_b32 s42, {f32bits(GELU_C0):#x}\ns_mov_b32 s43, {SLOT}")
    A("s_waitcnt lgkmcnt(0)")
    srd(A, 48, P_DBG, 256)
    A("s_cmp_eq_u32 s24, 0\ns_cbranch_scc1 k1_c0")
    A("s_cmp_lg_u32 s27, 0\ns_cbranch_scc1 k1_nocp")
    A("s_cmp_lg_u32 s2, 0\ns_cbranch_scc1 k1_nonon")
    A("s_memrealtime s[60:61]\ns_waitcnt lgkmcnt(0)\ns_or_b32 s60, s60, 1\nv_mov_b32 v7, s60\ns_movk_i32 s74, 252\ns_mov_b64 exec, 1\nbuffer_store_dword v7, off, s[48:51], s74 @SC@\ns_mov_b64 exec, -1")
    A("k1_nonon:")
    if cfg.get("cpf", 1):
        A(f"s_getpc_b64 s[60:61]\ncp_l:\ns_add_u32 s60, s60, {NAME}-cp_l\ns_addc_u32 s61, s61, -1\nv_lshlrev_b32 v160, 7, v1")
        for i in range(3):
            A("global_load_dword v7, v160, s[60:61]")
            if i < 2: A("v_add_u32 v160, 8192, v160")
    A("k1_nocp:")
    def prefetch(units):
        A("s_lshl_b32 s58, s2, 2\ns_add_u32 s58, s58, s27\ns_lshl_b32 s59, s58, 13\ns_mul_i32 s58, s58, 2688")
        A("v_lshlrev_b32 v161, 7, v1\nv_min_u32 v162, 20, v1\nv_lshlrev_b32 v162, 7, v162")
        srd(A, 64, P_WSP, 2048 * 2048 * 2)
        srd(A, 68, P_WO, 2304 * 576 * 2)
        if "w" in units: A("buffer_load_dword v7, v161, s[64:67], s59 offen")
        if "o" in units: A("buffer_load_dword v7, v162, s[68:71], s58 offen")
    pf_at = cfg.get("pf_at", 1)
    for i in range(9):
        if i == pf_at and cfg.get("pf_early", ""): prefetch(cfg.get("pf_early", ""))
        A("s_barrier")
    A("s_branch k1_c1")
    slot_adv = [('raw', f"s_add_u32 s30, s30, {SLOT}\ns_cmp_eq_u32 s30, {SLOT*NS}\ns_cselect_b32 s30, 0, s30\ns_cselect_b32 s29, {-SLOT*(NS-1)}, s43"),
                ('raw', "v_add_u32 v4, s29, v4"), ('raw', "v_add_u32 v5, s29, v5"), ('raw', "v_add_u32 v6, s29, v6")]
    for typ in (0, 1):
        A(f"k1_c{typ}:")
        def xoff(a): return a * 512 if typ == 0 else a * 2048
        def rdx(b, a, sub): return ('lds', f"ds_read_b128 {vr(xf(b,a))}, v{4+sub} offset:{xoff(a)}", f"x{b}{a}")
        def rdw(b, jf, sub):
            return [('lds', f"ds_read_b64_tr_b16 {vr(wf(b,jf)+2*h, 2)}, v6 offset:{sub*9728 + h*1152 + jf*32}", f"w{b}{jf}") for h in range(2)]
        def mf(a, jf, b):
            X, W = vr(xf(b, a)), vr(wf(b, jf))
            a_, b_ = (X, W) if typ == 0 else (W, X)
            return ('use', f"v_mfma_f32_16x16x32_bf16 {vr(acc(a,jf))}, {a_}, {b_}, {vr(acc(a,jf))}", [f"x{b}{a}", f"w{b}{jf}"])
        def reads(b, sub):
            o = [rdx(b, 0, sub), rdx(b, 1, sub)]
            for jf in range(9): o += rdw(b, jf, sub)
            return o
        A("s_barrier")
        stamp(1)
        A(f"s_setprio {cfg.get('prio_mm', 1)}")
        for it in reads(0, 0): A(it[1])
        A("s_waitcnt lgkmcnt(0)")
        body = []
        body += interleave([mf(a, jf, 0) for jf in range(9) for a in range(2)], reads(1, 1) + slot_adv, per=2)
        body += [('wait0', "s_barrier" if typ == 0 else "s_cmp_eq_u32 s31, 8\ns_cbranch_scc1 k1_nb\ns_barrier\nk1_nb:")]
        body += interleave([mf(a, jf, 1) for jf in range(9) for a in range(2)], reads(0, 0) + [('raw', "s_add_u32 s31, s31, 1\ns_cmp_lt_u32 s31, 9")], per=2)
        body += [('raw', f"s_cbranch_scc1 k1_loop{typ}")]
        A(f"k1_loop{typ}:")
        for l in sched(body): A(l)
        A("s_waitcnt lgkmcnt(0)\ns_nop 7")
        stamp(2)
        if typ == 0: A("s_branch k1_epiA")
    CV = 80; T = 84
    A(f"s_setprio 0\ns_waitcnt vmcnt(0)\nv_mov_b32 v{CV}, s42\nv_mov_b32 v{CV+1}, s42")
    srd(A, 32, P_WS, ZBYTES, WS_Z1)
    srd(A, 64, P_B, 4096)
    A("s_lshl_b32 s36, s22, 4\ns_add_u32 s36, s36, s23\ns_lshl_b32 s36, s36, 2\ns_add_u32 s36, s36, s27\ns_mul_i32 s36, s36, 9216")
    A("v_lshlrev_b32 v7, 4, v1")
    A("s_lshl_b32 s37, s22, 7\ns_lshl_b32 s38, s27, 5\ns_add_u32 s37, s37, s38\nv_add_u32 v160, s37, v2\nv_lshlrev_b32 v160, 1, v160")
    A("buffer_load_ushort v161, v160, s[64:67], 0 offen\nbuffer_load_ushort v162, v160, s[64:67], 0 offen offset:32")
    for jf in range(9):
        for l in gelu_ops([acc(0, jf), acc(0, jf) + 2, acc(1, jf), acc(1, jf) + 2], T, CV): A(l)
        P = 104 + (jf % 4) * 4
        a0, a1 = acc(0, jf), acc(1, jf)
        A(f"v_cvt_pk_bf16_f32 v{P}, v{a0}, v{a0+1}\nv_cvt_pk_bf16_f32 v{P+1}, v{a0+2}, v{a0+3}")
        A(f"v_cvt_pk_bf16_f32 v{P+2}, v{a1}, v{a1+1}\nv_cvt_pk_bf16_f32 v{P+3}, v{a1+2}, v{a1+3}")
        A(f"buffer_store_dwordx4 {vr(P)}, v7, s[32:35], s36 offen offset:{(jf%4)*1024} {cfg.get('z1_st', '')}")
        if jf % 4 == 3: A("s_add_u32 s36, s36, 4096")
    A("s_waitcnt vmcnt(9)\nv_lshlrev_b32 v161, 16, v161\nv_lshlrev_b32 v162, 16, v162")
    for it in range(2):
        for r in range(36): A(f"v_mov_b32 v{acc(it,0)+r}, v{161+it}")
    stamp(3)
    A(f"s_add_u32 s29, s30, {WOFF}\nv_add_u32 v6, s29, v7\ns_mov_b32 s31, 0")
    def rdw2(b, it, sub): return ('lds', f"ds_read_b128 {vr(xf(b,it))}, v{4+sub} offset:{it*2048}", f"w{b}{it}")
    def rdz2(b, jf, sub): return ('lds', f"ds_read_b128 {vr(wf(b,jf))}, v6 offset:{(sub*9+jf)*1024}", f"z{b}{jf}")
    def mf2(it, jf, b): return ('use', f"v_mfma_f32_16x16x32_bf16 {vr(acc(it,jf))}, {vr(wf(b,jf))}, {vr(xf(b,it))}, {vr(acc(it,jf))}", [f"w{b}{it}", f"z{b}{jf}"])
    def reads2(b, sub): return [rdw2(b, 0, sub), rdw2(b, 1, sub)] + [rdz2(b, jf, sub) for jf in range(9)]
    A("s_waitcnt vmcnt(0)\ns_barrier\ns_barrier\ns_barrier")
    stamp(4)
    A(f"s_setprio {cfg.get('prio_mm', 1)}")
    for it in reads2(0, 0): A(it[1])
    A("s_waitcnt lgkmcnt(0)")
    body = []
    body += interleave([mf2(it, jf, 0) for jf in range(9) for it in range(2)], reads2(1, 1) + slot_adv)
    body += [('wait0', "s_barrier")]
    body += interleave([mf2(it, jf, 1) for jf in range(9) for it in range(2)], reads2(0, 0) + [('raw', "s_add_u32 s31, s31, 1\ns_cmp_lt_u32 s31, 32")])
    body += [('raw', "s_cbranch_scc1 k2_loop")]
    A("k2_loop:")
    for l in sched(body): A(l)
    A("s_waitcnt lgkmcnt(0)\ns_mul_i32 s29, s27, 9216\ns_add_u32 s29, s29, s30\nv_add_u32 v6, s29, v7")
    stamp(5)
    Z1 = 96
    for jf in range(9): A(f"ds_read_b128 {vr(Z1+4*jf)}, v6 offset:{jf*1024}")
    srd(A, 32, P_WS, ZBYTES, WS_H)
    A("s_lshl_b32 s36, s22, 3\ns_lshl_b32 s37, s27, 1\ns_add_u32 s36, s36, s37\ns_lshl_b32 s36, s36, 4\ns_add_u32 s36, s36, s23\ns_mul_i32 s36, s36, 4608")
    A("s_add_u32 s37, s36, 4096\nv_lshlrev_b32 v6, 3, v1")
    A("s_waitcnt lgkmcnt(0)\ns_barrier\ns_setprio 0")
    T2 = 80
    n = 0
    for it in range(2):
        for jf in range(9):
            z = Z1 + 4 * jf + 2 * it; a = acc(it, jf); t = T2 + (jf % 2) * 4
            A(f"v_lshlrev_b32 v{t}, 16, v{z}\nv_and_b32 v{t+1}, 0xffff0000, v{z}\nv_lshlrev_b32 v{t+2}, 16, v{z+1}\nv_and_b32 v{t+3}, 0xffff0000, v{z+1}")
            A(f"v_pk_mul_f32 v[{a}:{a+1}], v[{a}:{a+1}], v[{t}:{t+1}]\nv_pk_mul_f32 v[{a+2}:{a+3}], v[{a+2}:{a+3}], v[{t+2}:{t+3}]")
            P = 136 + (n % 4) * 4 + (jf % 2) * 2
            A(f"v_cvt_pk_bf16_f32 v{P}, v{a}, v{a+1}\nv_cvt_pk_bf16_f32 v{P+1}, v{a+2}, v{a+3}")
            if jf % 2 == 1:
                A(f"buffer_store_dwordx4 {vr(P-2)}, v7, s[32:35], s36 offen offset:{(jf//2)*1024} {cfg.get('h_st','@SC@')}"); n += 1
            elif jf == 8:
                A(f"buffer_store_dwordx2 {vr(P,2)}, v6, s[32:35], s37 offen {cfg.get('h_st','@SC@')}"); n += 1
        if it == 0: A(f"s_add_u32 s36, s36, {16*4608}\ns_add_u32 s37, s37, {16*4608}")
    get_nonce("b", 160)
    srd(A, 64, P_WS, 0x40000, WS_FL)
    A("s_lshl_b32 s36, s22, 2\ns_add_u32 s36, s36, s27\ns_lshl_b32 s36, s36, 4\ns_add_u32 s36, s36, s23\ns_lshl_b32 s36, s36, @FS@\ns_add_u32 s36, s36, 0x20000")
    A("v_mov_b32 v160, s72\ns_mov_b64 exec, 1\nbuffer_store_dword v160, off, s[64:67], s36 @SC@\ns_mov_b64 exec, -1")
    stamp(6)
    def g3_tile():
        A("s_mul_i32 s55, s20, 30\ns_add_u32 s55, s55, s21")
        A("s_cmp_ge_u32 s21, 30\ns_cselect_b32 s55, 255, s55")
        A(f"s_mul_i32 s56, s55, {(65536+8)//9}\ns_lshr_b32 s56, s56, 16\ns_mul_i32 s57, s56, 9\ns_sub_u32 s57, s55, s57")
    g3_tile()
    A("s_cmp_ge_u32 s55, 234\ns_cbranch_scc1 k3_skip")
    ACC3 = 16; HF = 40; WF3 = 136
    acc3 = lambda t_: ACC3 + 4 * t_
    hf = lambda p, t_: HF + (p * 5 + t_) * 4 if p < 4 else HF + 80 + t_ * 2
    wf3 = lambda p: WF3 + 4 * p
    A("v_lshrrev_b32 v4, 2, v2\nv_lshl_add_u32 v4, v3, 2, v4")
    A("v_lshrrev_b32 v5, 1, v4\nv_and_b32 v5, 3, v5\nv_xor_b32 v5, s27, v5\nv_lshlrev_b32 v5, 5, v5")
    A(f"v_lshl_add_u32 v4, v4, 7, v5\nv_and_b32 v5, 3, v1\nv_lshl_add_u32 v4, v5, 3, v4\nv_add_u32 v14, {G3_A}, v4")
    A("v_mov_b32 v12, v7\nv_mov_b32 v13, v6")
    for r in range(ACC3, ACC3 + 20, 2): A(f"v_mov_b64 v[{r}:{r+1}], 0")
    A(f"s_mov_b32 s30, 0\ns_mov_b32 s31, 0\ns_mov_b32 s43, {G3_SLOT}")
    body = [('raw', "s_barrier")]
    rd = []
    for p in range(5):
        if p < 4:
            for h in range(2): rd.append(('lds', f"ds_read_b64_tr_b16 {vr(wf3(p)+2*h,2)}, v14 offset:{(32*p+16*h)*128}", f"w{p}"))
            for t_ in range(5): rd.append(('lds', f"ds_read_b128 {vr(hf(p,t_))}, v12 offset:{t_*4608+p*1024}", f"h{p}{t_}"))
        else:
            rd.append(('lds', f"ds_read_b64_tr_b16 {vr(wf3(4),2)}, v14 offset:{128*128}", "w4"))
            for t_ in range(5): rd.append(('lds', f"ds_read_b64 {vr(hf(4,t_),2)}, v13 offset:{t_*4608+4096}", f"h4{t_}"))
    ms = []
    for p in range(5):
        for t_ in range(5):
            if p < 4: ms.append(('use', f"v_mfma_f32_16x16x32_bf16 {vr(acc3(t_))}, {vr(wf3(p))}, {vr(hf(p,t_))}, {vr(acc3(t_))}", [f"w{p}", f"h{p}{t_}"]))
            else: ms.append(('use', f"v_mfma_f32_16x16x16_bf16 {vr(acc3(t_))}, {vr(wf3(4),2)}, {vr(hf(4,t_),2)}, {vr(acc3(t_))}", ["w4", f"h4{t_}"]))
    body += rd[:14]
    upd = [('raw', f"s_add_u32 s30, s30, {G3_SLOT}\ns_cmp_eq_u32 s30, {G3_SLOT*G3_NS}\ns_cselect_b32 s30, 0, s30\ns_cselect_b32 s29, {-G3_SLOT*(G3_NS-1)}, s43"),
           ('raw', "v_add_u32 v12, s29, v12"), ('raw', "v_add_u32 v13, s29, v13"), ('raw', "v_add_u32 v14, s29, v14"),
           ('raw', "s_add_u32 s31, s31, 1\ns_cmp_lt_u32 s31, 16")]
    body += interleave(ms, rd[14:] + upd, per=2)
    body += [('raw', "s_cbranch_scc1 k3_loop")]
    A("s_waitcnt lgkmcnt(0)\ns_barrier\ns_barrier")
    A("k3_loop:")
    for l in sched(body): A(l)
    A("s_nop 7\ns_nop 3")
    stamp(7)
    srd(A, 32, P_OUT, 2048 * 576 * 2)
    A("s_mul_i32 s36, s56, 80\nv_add_u32 v4, s36, v2\ns_movk_i32 s36, 1152\nv_mul_lo_u32 v4, v4, s36")
    A("s_lshl_b32 s36, s57, 7\ns_lshl_b32 s37, s27, 5\ns_add_u32 s36, s36, s37\nv_lshl_add_u32 v4, v3, 3, v4\nv_add_u32 v4, s36, v4")
    A("s_mov_b32 s36, 0")
    for t_ in range(5):
        a = acc3(t_); P = 40 + 2 * t_
        A(f"v_cvt_pk_bf16_f32 v{P}, v{a}, v{a+1}\nv_cvt_pk_bf16_f32 v{P+1}, v{a+2}, v{a+3}")
        A(f"buffer_store_dwordx2 {vr(P,2)}, v4, s[32:35], s36 offen {cfg.get('out_st','')}")
        A(f"s_add_u32 s36, s36, {16*1152}")
    A("k3_skip:")
    flush(1, 9, 4)
    if ts and cfg.get("spin"):
        k, col = cfg["spin"]
        A("s_cmp_lg_u32 s2, 0\ns_cbranch_scc1 k3_nospin\ns_cmp_lg_u32 s26, 4\ns_cbranch_scc1 k3_nospin")
        A(f"s_mov_b32 s61, s{80+2*col}\ns_mov_b32 s64, 0")
        A("k3_spin:\ns_memrealtime s[62:63]\ns_waitcnt lgkmcnt(0)\ns_add_u32 s64, s64, 1\ns_cmp_gt_u32 s64, 0x100000\ns_cbranch_scc1 k3_nospin\ns_sub_u32 s62, s62, s61\ns_cmp_lt_u32 s62, 10000\ns_cbranch_scc1 k3_spin")
        A("k3_nospin:")
    A("s_endpgm")
    A("k1_epiA:")
    A(f"s_setprio {cfg.get('prio_epi', 2)}\nv_mov_b32 v{CV}, s42\nv_mov_b32 v{CV+1}, s42")
    S1 = 128; S2 = 136
    nbar = 0
    split = cfg.get("k1_split", [3, 3, 3])
    jf = 0
    for n in split:
        for _ in range(n):
            for l in gelu_ops([acc(0, jf), acc(0, jf) + 2, acc(1, jf), acc(1, jf) + 2], T, CV): A(l)
            for a in range(2):
                for h in range(2):
                    x = acc(a, jf) + 2 * h; s1 = S1 + 4 * a + 2 * h; s2 = S2 + 4 * a + 2 * h
                    if jf == 0: A(f"v_mov_b64 v[{s1}:{s1+1}], v[{x}:{x+1}]\nv_pk_mul_f32 v[{s2}:{s2+1}], v[{x}:{x+1}], v[{x}:{x+1}]")
                    else: A(f"v_pk_add_f32 v[{s1}:{s1+1}], v[{s1}:{s1+1}], v[{x}:{x+1}]\nv_pk_fma_f32 v[{s2}:{s2+1}], v[{x}:{x+1}], v[{x}:{x+1}], v[{s2}:{s2+1}]")
            jf += 1
        if jf < 9: A("s_barrier"); nbar += 1
    assert jf == 9
    def dpp_reduce():
        for ror in (8, 4, 2, 1):
            for r in range(S1, S1 + 16): A(f"v_add_f32_dpp v{r}, v{r}, v{r} row_ror:{ror} row_mask:0xf bank_mask:0xf")
    A("s_nop 1")
    dpp_reduce()
    srd(A, 32, P_WS, 16 * 2 * 16 * 512, WS_PS)
    A("s_lshl_b32 s36, s22, 14\ns_lshl_b32 s38, s27, 7\ns_add_u32 s36, s36, s38")
    A("s_lshl_b32 s37, s23, 9\ns_add_u32 s37, s37, s36\ns_add_u32 s38, s37, 8192")
    A("v_lshlrev_b32 v4, 5, v3")
    A("v_cmp_eq_u32 vcc, 0, v2\ns_and_saveexec_b64 s[44:45], vcc")
    for a in range(2):
        A(f"buffer_store_dwordx4 {vr(S1+4*a)}, v4, s[32:35], s37 offen offset:{16*a} @SC@")
        A(f"buffer_store_dwordx4 {vr(S2+4*a)}, v4, s[32:35], s38 offen offset:{16*a} @SC@")
    A("s_mov_b64 exec, s[44:45]")
    stamp(3)
    A("s_lshl_b32 s39, s22, 3\ns_add_u32 s38, s36, 8192")
    A("v_lshl_add_u32 v4, v2, 9, v4")
    for _ in range(cfg.get("k1_pubwait", 1)): A("s_barrier"); nbar += 1
    A("s_waitcnt vmcnt(0)\ns_barrier"); nbar += 1
    A("s_cmp_lg_u32 s27, 0\ns_cbranch_scc1 k1_noat")
    A("s_mov_b64 exec, 1\nv_mov_b32 v5, 1\nbuffer_atomic_add v5, off, s[48:51], s39 sc1\ns_mov_b64 exec, -1")
    A("k1_noat:")
    rem = 8 - nbar
    assert rem >= 0
    A("s_mov_b32 s47, 0")
    spec = min(cfg.get("k1_spec", 1), rem)
    for i in range(rem):
        if rem - i == spec: A("buffer_load_dword v5, off, s[48:51], s39 @SC@")
        A("s_barrier")
    if spec > 0: A("s_branch k1_poll2")
    A("k1_poll:\nbuffer_load_dword v5, off, s[48:51], s39 @SC@\nk1_poll2:\ns_waitcnt vmcnt(0)\nv_readfirstlane_b32 s46, v5\ns_add_u32 s47, s47, 1\ns_nop 3")
    A("s_cmp_ge_u32 s46, 16\ns_cbranch_scc1 k1_polled\ns_sleep @SL@\ns_cmp_lt_u32 s47, 0x40000\ns_cbranch_scc1 k1_poll")
    A("k1_polled:")
    for a in range(2):
        A(f"buffer_load_dwordx4 {vr(S1+4*a)}, v4, s[32:35], s36 offen offset:{16*a} @SC@")
        A(f"buffer_load_dwordx4 {vr(S2+4*a)}, v4, s[32:35], s38 offen offset:{16*a} @SC@")
    get_nonce("a", 5)
    stamp(4)
    dpp_reduce()
    A(f"s_mov_b32 s40, {f32bits(1.0/2304):#x}\ns_mov_b32 s41, {f32bits(1e-5):#x}")
    for r in range(8): A(f"v_mul_f32 v{S1+r}, s40, v{S1+r}")
    for r in range(8): A(f"v_mul_f32 v{S2+r}, s40, v{S2+r}")
    for r in range(8): A(f"v_fma_f32 v{S2+r}, -v{S1+r}, v{S1+r}, v{S2+r}")
    for r in range(8): A(f"v_max_f32 v{S2+r}, 0, v{S2+r}")
    for r in range(8): A(f"v_add_f32 v{S2+r}, s41, v{S2+r}")
    for r in range(8): A(f"v_rsq_f32 v{S2+r}, v{S2+r}")
    A("s_nop 0")
    for r in range(8): A(f"v_mul_f32 v{S1+r}, v{S1+r}, v{S2+r}")
    srd(A, 32, P_WS, ZBYTES, WS_Z2)
    A("s_lshl_b32 s36, s23, 6\ns_lshl_b32 s37, s22, 2\ns_add_u32 s36, s36, s37\ns_add_u32 s36, s36, s27\ns_lshl_b32 s38, s36, @FS@\ns_mul_i32 s36, s36, 9216")
    A("v_lshlrev_b32 v4, 4, v1")
    stamp(5)
    for jf in range(9):
        for a in range(2):
            for h in range(2):
                x = acc(a, jf) + 2 * h; s1 = S1 + 4 * a + 2 * h; s2 = S2 + 4 * a + 2 * h
                A(f"v_pk_fma_f32 v[{x}:{x+1}], v[{x}:{x+1}], v[{s2}:{s2+1}], v[{s1}:{s1+1}] neg_lo:[0,0,1] neg_hi:[0,0,1]")
        P = 104 + (jf % 4) * 4
        a0, a1 = acc(0, jf), acc(1, jf)
        A(f"v_cvt_pk_bf16_f32 v{P}, v{a0}, v{a0+1}\nv_cvt_pk_bf16_f32 v{P+1}, v{a0+2}, v{a0+3}")
        A(f"v_cvt_pk_bf16_f32 v{P+2}, v{a1}, v{a1+1}\nv_cvt_pk_bf16_f32 v{P+3}, v{a1+2}, v{a1+3}")
        A(f"buffer_store_dwordx4 {vr(P)}, v4, s[32:35], s36 offen offset:{(jf%4)*1024} {cfg.get('z2_st', '@SC@')}")
        if jf % 4 == 3: A("s_add_u32 s36, s36, 4096")
    srd(A, 64, P_WS, 0x40000, WS_FL)
    A("v_mov_b32 v5, s72\ns_waitcnt vmcnt(0)")
    stamp(3)
    A("s_mov_b64 exec, 1\nbuffer_store_dword v5, off, s[64:67], s38 @SC@\ns_mov_b64 exec, -1")
    flush(0, 7, 0)
    A("s_endpgm")
    A("k_loader:")
    A(f"s_setprio {cfg.get('prio_ld', 3)}")
    A("s_sub_u32 s27, s26, 8")
    rot = cfg.get("k1_rot", 3)
    if rot == 1: A("s_lshl_b32 s55, s54, 1\ns_add_u32 s55, s55, s53\ns_cmp_ge_u32 s55, 9\ns_cselect_b32 s56, 9, 0\ns_sub_u32 s55, s55, s56")
    elif rot == 3: A("s_add_u32 s55, s53, s54\ns_mul_i32 s56, s55, 11\ns_lshr_b32 s56, s56, 5\ns_mul_i32 s56, s56, 3\ns_sub_u32 s55, s55, s56\ns_mul_i32 s55, s55, 3")
    else: A("s_mov_b32 s55, 0")
    A(f"s_lshl_b32 s36, s55, 7\ns_mul_i32 s37, s55, {64*9216}")
    A("v_lshrrev_b32 v4, 3, v1\nv_and_b32 v5, 7, v1")
    A("s_lshl_b32 s28, s22, 7\ns_lshl_b32 s29, s27, 5\ns_add_u32 s28, s28, s29")
    A("s_movk_i32 s29, 1152\nv_add_u32 v13, s28, v4\nv_mul_lo_u32 v6, v13, s29")
    A("v_xor_b32 v7, v3, v5\nv_and_b32 v8, 1, v3\nv_xor_b32 v8, v8, v5")
    for j in range(4): A(f"v_xor_b32 v9, {2*j}, v8\nv_lshl_add_u32 v9, v9, 4, v6\nv_add_u32 v{16+j}, {j*(8*1152-1024)}, v9")
    A("s_lshl_b32 s28, s27, 12\ns_mov_b32 m0, s28\ns_mov_b32 s30, 0")
    A("s_waitcnt lgkmcnt(0)")
    srd(A, 32, P_X, 2048 * 576 * 2)
    srd(A, 64, P_WIN, 576 * 4608 * 2)
    for j in range(4): A(f"buffer_load_dwordx4 v{16+j}, s[32:35], s36 offen offset:{j*1024} {aux} lds")
    A(f"s_mov_b32 s29, {(2**32 + 151)//152:#x}\ns_mov_b32 s38, {(2**32 + 17)//18:#x}\ns_mul_i32 s39, s23, 288\ns_add_u32 s39, s39, 4608")
    A(f"s_mul_i32 s57, s27, 5120\ns_add_u32 s57, s57, {WOFF}\ns_mul_i32 s58, s27, 320\ns_movk_i32 s59, 9216\ns_movk_i32 s56, 144")
    A("v_mov_b32 v12, 0x7f000000")
    for j in range(5):
        A(f"v_add_u32 v9, {64*j}, v1\nv_add_u32 v9, s58, v9\nv_mul_hi_u32 v10, v9, s29")
        A("v_mul_u32_u24 v11, 152, v10\nv_sub_u32 v9, v9, v11\nv_mul_hi_u32 v11, v9, s38")
        A("v_cmp_gt_u32 vcc, s56, v9\nv_lshl_add_u32 v10, v10, 3, v11\nv_mul_u32_u24 v11, 18, v11\nv_sub_u32 v9, v9, v11")
        A(f"v_mul_lo_u32 v11, v10, s59\nv_lshl_add_u32 v9, v9, 4, v11\ns_sub_u32 s60, s39, {(j%4)*1024}\nv_add_u32 v9, s60, v9")
        A(f"v_cndmask_b32 v9, v12, v9, vcc\nv_cmp_gt_u32 vcc, 64, v10\ns_nop 1\nv_cndmask_b32 v{24+j}, v12, v9, vcc")
        if j % 4 == 0: A(f"s_add_u32 m0, s57, {j*1024}\ns_nop 0")
        A(f"buffer_load_dwordx4 v{24+j}, s[64:67], s37 offen offset:{(j%4)*1024} {aux} lds")
    A("s_mov_b32 s29, s57")
    for j in range(4): A(f"v_xor_b32 v9, {4*(j&1)}, v7\nv_lshl_add_u32 v9, v9, 4, v6\nv_add_u32 v{20+j}, {j*(8*1152-1024)}, v9")
    def slot_next(reg=30): A(f"s_add_u32 s{reg}, s{reg}, {SLOT}\ns_cmp_eq_u32 s{reg}, {SLOT*NS}\ns_cselect_b32 s{reg}, 0, s{reg}")
    def adv1():
        A(f"s_add_u32 s36, s36, 128\ns_add_u32 s37, s37, {64*9216}\ns_cmp_eq_u32 s36, {9*128}\ns_cselect_b32 s36, 0, s36\ns_cselect_b32 s37, 0, s37")
        slot_next()
    def issueA(slot, so, ax):
        A(f"s_add_u32 m0, s{slot}, s28\ns_nop 0")
        for j in range(4): A(f"buffer_load_dwordx4 v{16+j}, s[32:35], s{so} offen offset:{j*1024} {ax} lds")
    def issueB(slot, so, ax):
        A(f"s_add_u32 s39, s{slot}, s29")
        for j in range(5):
            if j % 4 == 0: A(f"s_add_u32 m0, s39, {j*1024}\ns_nop 0")
            A(f"buffer_load_dwordx4 v{24+j}, s[64:67], s{so} offen offset:{(j%4)*1024} {ax} lds")
    adv1()
    issueA(30, 36, aux); issueB(30, 37, aux); adv1()
    A("s_mov_b32 s31, 2")
    A("k1_lloop:")
    issueA(30, 36, aux); issueB(30, 37, aux); adv1()
    A("s_waitcnt vmcnt(18)\ns_barrier")
    A("s_add_u32 s31, s31, 1\ns_cmp_lg_u32 s31, 9\ns_cbranch_scc1 k1_lsame")
    for j in range(4): A(f"v_mov_b32 v{16+j}, v{20+j}")
    for j in range(5): A(f"v_subrev_u32 v{24+j}, 4608, v{24+j}")
    A("k1_lsame:")
    A("s_cmp_lt_u32 s31, 18\ns_cbranch_scc1 k1_lloop")
    stamp(1)
    A("v_lshlrev_b32 v6, 12, v13")
    for j in range(4): A(f"v_xor_b32 v9, {4*(j&1)}, v7\nv_lshl_add_u32 v9, v9, 4, v6\nv_add_u32 v{16+j}, {j*(8*4096-1024)}, v9")
    A(f"s_mul_i32 s38, s23, {32*18432}\ns_mul_i32 s39, s27, 5120\ns_add_u32 s38, s38, s39\nv_lshlrev_b32 v9, 4, v1\nv_add_u32 v9, s38, v9")
    A("s_cmp_eq_u32 s27, 3\ns_cselect_b64 vcc, -1, 0")
    for j in range(5):
        if j < 3: A(f"v_mov_b32 v{24+j}, v9")
        elif j == 3: A(f"v_cndmask_b32 v{24+j}, v9, v12, vcc")
        else: A(f"v_add_u32 v9, 4096, v9\nv_cndmask_b32 v{24+j}, v9, v12, vcc")
    srd(A, 32, P_WSP, 2048 * 2048 * 2)
    srd(A, 64, P_WS, ZBYTES, WS_Z2)
    srd(A, 48, P_DBG, 256)
    srd(A, 68, P_WS, 0x40000, WS_FL)
    A("s_mov_b32 s36, 0\ns_mov_b32 s37, 0\ns_mov_b32 s60, s30")
    if cfg.get("g2_rot", 1): A(f"s_lshl_b32 s36, s52, 10\ns_mul_i32 s37, s52, {8*18432}")
    if cfg.get("noearlyW"): A("s_mov_b32 s34, 0")
    def advW(): A("s_add_u32 s36, s36, 128\ns_and_b32 s36, s36, 4095")
    def advZ(): A(f"s_add_u32 s37, s37, 18432\ns_cmp_eq_u32 s37, {32*18432}\ns_cselect_b32 s37, 0, s37")
    issueA(30, 36, ""); advW(); slot_next()
    A("s_waitcnt vmcnt(13)\ns_barrier")
    issueA(30, 36, ""); advW(); slot_next()
    A("s_waitcnt vmcnt(8)\ns_barrier")
    issueA(30, 36, ""); advW(); slot_next()
    A("s_lshl_b32 s38, s23, 6+@FS@\nv_lshlrev_b32 v10, @FS@, v1\ns_mov_b32 s47, 0")
    A("s_cmp_lg_u32 s27, 0\ns_cbranch_scc1 kz_x")
    get_nonce("l", 9)
    A("s_barrier")
    A("kz_poll:\nbuffer_load_dword v9, v10, s[68:71], s38 offen @SC@\ns_add_u32 s47, s47, 1\ns_waitcnt vmcnt(0)\nv_cmp_ne_u32 vcc, s72, v9\ns_nop 4")
    A("s_cbranch_vccz kz_ok\ns_sleep @SL@\ns_cmp_lt_u32 s47, 0x40000\ns_cbranch_scc1 kz_poll\ns_branch kz_ok")
    A("kz_x:\ns_barrier\nkz_ok:\ns_barrier")
    stamp(2)
    if cfg.get("noearlyW"): A(f"s_mov_b32 s34, {2048*2048*2}")
    for i in range(3):
        issueB(60, 37, haux); advZ(); slot_next(60)
    A("s_waitcnt vmcnt(10)\ns_barrier")
    issueA(30, 36, ""); issueB(30, 37, haux); advW(); advZ(); slot_next()
    A("s_waitcnt vmcnt(14)\ns_barrier")
    A("s_mov_b32 s31, 22")
    A("k2_lloop:")
    issueA(30, 36, ""); issueB(30, 37, haux); advW(); advZ(); slot_next()
    A("s_waitcnt vmcnt(18)\ns_barrier")
    A("s_add_u32 s31, s31, 1\ns_cmp_lt_u32 s31, 50\ns_cbranch_scc1 k2_lloop")
    srd(A, 32, P_WS, ZBYTES, WS_Z1)
    A("s_lshl_b32 s36, s22, 4\ns_add_u32 s36, s36, s23\ns_lshl_b32 s36, s36, 2\ns_add_u32 s36, s36, s27\ns_mul_i32 s36, s36, 9216")
    A("s_mul_i32 s39, s27, 9216\ns_add_u32 s39, s39, s30\nv_lshlrev_b32 v9, 4, v1")
    for j in range(9):
        if j % 4 == 0: A(f"s_add_u32 m0, s39, {j*1024}\ns_nop 0")
        A(f"buffer_load_dwordx4 v9, s[32:35], s36 offen offset:{(j%4)*1024} lds")
        if j % 4 == 3: A("s_add_u32 s36, s36, 4096")
    A("s_waitcnt vmcnt(18)\ns_barrier")
    g3_tile()
    A("s_mul_i32 s28, s27, 384")
    A(f"s_mov_b32 s29, {(2**32 + 287)//288:#x}\ns_mov_b32 s36, {16*4608}\ns_mul_i32 s37, s56, {5*16*4608}\ns_movk_i32 s38, 288\ns_movk_i32 s39, 1440")
    for j in range(6):
        A(f"v_add_u32 v6, {64*j}, v1\nv_add_u32 v6, s28, v6\nv_mul_hi_u32 v7, v6, s29\nv_mul_lo_u32 v8, v7, s38\nv_sub_u32 v8, v6, v8")
        A("v_mul_lo_u32 v7, v7, s36\nv_lshl_add_u32 v7, v8, 4, v7\nv_add_u32 v7, s37, v7")
        A(f"v_cmp_gt_u32 vcc, s39, v6\nv_subrev_u32 v7, {(j%4)*1024}, v7\ns_nop 0\nv_cndmask_b32 v{16+j}, v12, v7, vcc")
    A("s_waitcnt vmcnt(9)\ns_barrier")
    A("v_and_b32 v6, 6, v4\nv_xor_b32 v6, v5, v6\nv_lshlrev_b32 v6, 4, v6")
    A("s_mul_i32 s28, s27, 40\nv_add_u32 v7, s28, v4\ns_movk_i32 s28, 1152\nv_mul_lo_u32 v7, v7, s28\nv_add_u32 v7, v7, v6\ns_lshl_b32 s28, s57, 7\nv_add_u32 v7, s28, v7")
    A("s_cmp_eq_u32 s27, 3\ns_cselect_b64 vcc, -1, 0")
    for j in range(5):
        A(f"v_add_u32 v{24+j}, {j*8*1152 - (j%4)*1024}, v7")
        if j >= 3: A(f"v_cndmask_b32 v{24+j}, v{24+j}, v12, vcc")
    srd(A, 32, P_WS, ZBYTES, WS_H)
    srd(A, 64, P_WO, 2304 * 576 * 2)
    A(f"s_mul_i32 s28, s27, 6144\ns_mul_i32 s29, s27, 5120\ns_add_u32 s29, s29, {G3_A}")
    A("s_waitcnt vmcnt(0)\ns_barrier\ns_barrier")
    stamp(3)
    A("s_cmp_ge_u32 s55, 234\ns_cbranch_scc1 kl_done")
    def slot3(reg): A(f"s_add_u32 s{reg}, s{reg}, {G3_SLOT}\ns_cmp_eq_u32 s{reg}, {G3_SLOT*G3_NS}\ns_cselect_b32 s{reg}, 0, s{reg}")
    def issueH(slot):
        A(f"s_add_u32 s38, s{slot}, s28")
        for j in range(6):
            if j % 4 == 0: A(f"s_add_u32 m0, s38, {j*1024}\ns_nop 0")
            A(f"buffer_load_dwordx4 v{16+j}, s[32:35], s36 offen offset:{(j%4)*1024} {haux} lds")
        A(f"s_add_u32 s36, s36, 4608\ns_cmp_eq_u32 s36, {16*4608}\ns_cselect_b32 s36, 0, s36")
    def issueO(slot):
        issueB(slot, 37, ""); A(f"s_add_u32 s37, s37, {144*1152}\ns_cmp_eq_u32 s37, {16*144*1152}\ns_cselect_b32 s37, 0, s37")
    A("s_mov_b32 s30, 0\ns_mov_b32 s36, 0\ns_mov_b32 s37, 0")
    if cfg.get("g3_rot", 1): A(f"s_mul_i32 s36, s20, {2*4608}\ns_mul_i32 s37, s20, {2*144*1152}")
    for i in range(3): issueO(30); slot3(30)
    A("s_mul_i32 s38, s56, 5\ns_lshr_b32 s38, s38, 1\ns_sub_u32 s39, 64, s38\ns_lshl_b32 s39, s39, 4\ns_min_u32 s39, s39, 48\ns_lshl_b32 s38, s38, 4+@FS@\ns_add_u32 s38, s38, 0x20000")
    A("s_barrier\ns_cmp_lg_u32 s27, 0\ns_cbranch_scc1 kh_ok")
    A("v_cmp_gt_u32 vcc, s39, v1\ns_and_saveexec_b64 s[44:45], vcc\ns_mov_b32 s47, 0")
    A("kh_poll:\nbuffer_load_dword v9, v10, s[68:71], s38 offen @SC@\ns_add_u32 s47, s47, 1\ns_waitcnt vmcnt(0)\nv_cmp_ne_u32 vcc, s72, v9\ns_nop 4")
    A("s_cbranch_vccz kh_ok\ns_sleep @SL@\ns_cmp_lt_u32 s47, 0x40000\ns_cbranch_scc1 kh_poll\nkh_ok:\ns_mov_b64 exec, -1\ns_barrier")
    stamp(4)
    for i in range(3): issueH(30); slot3(30)
    A("s_waitcnt vmcnt(12)\ns_barrier")
    stamp(5)
    A("s_waitcnt vmcnt(6)\ns_barrier")
    A("s_mov_b32 s31, 3")
    A("k3_lloop:")
    issueO(30); issueH(30); slot3(30)
    A("s_waitcnt vmcnt(11)\ns_barrier")
    A("s_add_u32 s31, s31, 1\ns_cmp_lt_u32 s31, 16\ns_cbranch_scc1 k3_lloop")
    A("s_waitcnt vmcnt(0)\ns_barrier")
    A("kl_done:")
    flush(2, 7, 8)
    A("k_end:\ns_endpgm")
    A(".p2align 8\ntext_pad:\n.fill 2048, 4, 0xBF810000")

    head = open("standalone__mixer_gmlp__prompt.s.ref").read().split("\n")
    head = [l for l in head if l.startswith(";") and "@launch" not in l]
    hdr = "\n".join(head) + "\n"
    if cfg.get("aslist"): hdr += f"; @launch kernel={NAME} grid=(256,1,1) block=(768,1,1) lds={SLOT*NS}\n"
    else: hdr += f"; @launch grid=(256,1,1) block=(768,1,1) lds={SLOT*NS}\n"
    hdr += '.amdgcn_target "amdgcn-amd-amdhsa--gfx950"\n.text\n'
    tail = f""".section .rodata,"a"
.p2align 6
.amdhsa_kernel {NAME}
  .amdhsa_next_free_vgpr 168
  .amdhsa_next_free_sgpr 100
  .amdhsa_accum_offset 168
  .amdhsa_group_segment_fixed_size 0
  .amdhsa_kernarg_size 64
  .amdhsa_user_sgpr_count 2
  .amdhsa_user_sgpr_kernarg_segment_ptr 1
  .amdhsa_system_sgpr_workgroup_id_x 1
.end_amdhsa_kernel
"""
    return hdr + A.text().replace('@SC@', cfg.get('sc', 'sc1')).replace('@SL@', str(cfg.get('sleep', 4))).replace('@FS@', str(cfg.get('fs', 4))) + tail

if __name__ == "__main__":
    import json
    cfg = json.loads(sys.argv[2]) if len(sys.argv) > 2 else {}
    out = sys.argv[1] if len(sys.argv) > 1 else "standalone__mixer_gmlp__prompt.s"
    open(out, "w").write(build(cfg))
```

```python
import struct, sys, math
from gen_v3 import Asm, vr, sched, interleave, f32bits, gelu_ops, GELU_C0, GELU_C1

WS_Z2 = 0x1000000
WS_H  = 0x2000000
WS_PS = 0x3000000
WS_FL = 0x3100000
WS_TS = 0x3800000
ZBYTES = 2048 * 2304 * 2
WOFF = 16384
S1_SLOT = 16384 + 36864; S1_NS = 3
SLOT = 36864; NS = 4
G3_A = 24576; G3_SLOT = G3_A + 20480; G3_NS = 3
LDS_BYTES = SLOT * NS
NAME = "standalone__mixer_gmlp__prompt_kernel"
P_X, P_WIN, P_WSP, P_B, P_WO, P_OUT, P_DBG, P_WS = 4, 6, 8, 10, 12, 14, 16, 18
SPIN_MAX = 0x40000
NST = {0: 11, 1: 2, 2: 7}
PXCOLS = [(0, 2, 'p1end'), (0, 5, 'z2pub'), (0, 9, 'p2end'), (0, 6, 'g2start'), (0, 7, 'g2end'), (0, 8, 'hpub'), (2, 5, 'g3start'), (0, 10, 'end')]
PERM = True
def g3valid(i): return (i >> 3) < 30 and ((i & 1) * 4 + ((i >> 1) & 3)) * 30 + (i >> 3) < 234

def srd(A, d, base, nbytes, off=0):
    if off: A(f"s_add_u32 s{d}, s{base}, {off:#x}\ns_addc_u32 s{d+1}, s{base+1}, 0")
    else: A(f"s_mov_b32 s{d}, s{base}\ns_mov_b32 s{d+1}, s{base+1}")
    A(f"s_mov_b32 s{d+2}, {nbytes:#x}\ns_mov_b32 s{d+3}, 0x20000")

def build(cfg=None):
    cfg = cfg or {}
    A = Asm()
    ts = cfg.get("ts")
    FS = cfg.get("fs", 4); SL = cfg.get("sleep", 4); SC = "sc1"; PA = cfg.get("paux", "sc1")
    uid = [0]
    def lab(p): uid[0] += 1; return f"{p}_{uid[0]}"
    def stamp(i):
        if ts: A(f"s_memrealtime s[{80+2*i}:{81+2*i}]")
    def flush(role, n, wave):
        if not ts: return
        L = lab("ts_skip")
        A("s_waitcnt vmcnt(0)")
        stamp(n - 1)
        A(f"s_waitcnt lgkmcnt(0)\ns_cmp_lg_u32 s26, {wave}\ns_cbranch_scc1 {L}")
        srd(A, 76, P_WS, 0x40000, WS_TS + role * 0x10000)
        A("s_mov_b64 exec, 1\ns_lshl_b32 s75, s2, 7\nv_mov_b32 v4, s75")
        for i in range(n):
            A(f"v_mov_b32 v8, s{80+2*i}\nv_mov_b32 v9, s{81+2*i}\nbuffer_store_dwordx2 v[8:9], v4, s[76:79], 0 offen offset:{8*i}\ns_nop 1")
        A(f"{L}:")
    haux = cfg.get("haux", "sc1")

    A(f".globl {NAME}\n.p2align 8\n.type {NAME},@function\n{NAME}:")
    A("s_cmp_ge_u32 s2, 256\ns_cbranch_scc1 k_end")
    A("s_load_dwordx16 s[4:19], s[0:1], 0")
    stamp(0)
    A("""s_and_b32 s20, s2, 7
    s_lshr_b32 s21, s2, 3
    s_lshr_b32 s52, s20, 1
    s_and_b32 s22, s20, 1
    s_lshl_b32 s22, s22, 3
    s_and_b32 s53, s21, 7
    s_add_u32 s22, s22, s53
    s_lshr_b32 s54, s21, 3
    s_lshl_b32 s23, s52, 2
    s_add_u32 s23, s23, s54""")
    A("v_and_b32 v1, 63, v0\nv_lshrrev_b32 v2, 6, v0\ns_nop 0\nv_readfirstlane_b32 s26, v2")
    A("v_and_b32 v2, 15, v1\nv_lshrrev_b32 v3, 4, v1\ns_and_b32 s27, s26, 3")
    A("s_cmp_ge_u32 s26, 4\ns_cbranch_scc1 k_loader")
    A("v_lshrrev_b32 v4, 2, v2\nv_lshlrev_b32 v4, 3, v4\nv_and_b32 v5, 3, v2\nv_add_u32 v240, v4, v5")
    A("s_lshl_b32 s29, s27, 5\nv_add_u32 v4, s29, v240\nv_lshlrev_b32 v4, 7, v4\nv_lshrrev_b32 v5, 1, v2\nv_xor_b32 v5, v5, v3\nv_lshl_add_u32 v4, v5, 4, v4")
    A("v_mov_b32 v241, v4\nv_xor_b32 v5, 64, v4")
    A("v_lshrrev_b32 v6, 2, v2\nv_mul_u32_u24 v6, 288, v6\nv_mul_u32_u24 v7, 2432, v3\nv_add_u32 v6, v6, v7\nv_and_b32 v7, 3, v1\nv_lshl_add_u32 v6, v7, 3, v6")
    A(f"v_add_u32 v6, {WOFF}, v6\nv_lshlrev_b32 v7, 4, v1")
    ACC = 8; XF = 152; WF = 168
    acc = lambda a, u: ACC + (u // 9) * 72 + (a * 9 + u % 9) * 4
    xf = lambda b, a: XF + (b * 2 + a) * 4
    wf = lambda u: WF + u * 4
    for r in range(ACC, ACC + 144, 2): A(f"v_mov_b64 v[{r}:{r+1}], 0")
    A(f"s_mov_b32 s30, 0\ns_mov_b32 s31, 0\ns_mov_b32 s40, {f32bits(GELU_C1):#x}\ns_mov_b32 s41, {f32bits(GELU_C1):#x}\ns_mov_b32 s42, {f32bits(GELU_C0):#x}\ns_mov_b32 s43, {SLOT}")
    A("s_waitcnt lgkmcnt(0)")
    srd(A, 48, P_DBG, 256)
    srd(A, 64, P_B, 4096)
    A("s_cmp_lg_u32 s27, 0\ns_cbranch_scc1 k1_nocp")
    A("s_cmp_lg_u32 s2, 0\ns_cbranch_scc1 k1_nonon")
    A(f"s_memrealtime s[60:61]\ns_waitcnt lgkmcnt(0)\ns_or_b32 s60, s60, 1\nv_mov_b32 v243, s60\ns_mov_b64 exec, 1\nbuffer_store_dword v243, off, s[48:51], 0 {SC}\ns_mov_b64 exec, -1")
    A("k1_nonon:")
    if cfg.get("cpf", 1):
        A(f"s_getpc_b64 s[60:61]\ncp_l:\ns_add_u32 s60, s60, {NAME}-cp_l\ns_addc_u32 s61, s61, -1\nv_lshlrev_b32 v244, 7, v1")
        for i in range(3):
            A("global_load_dword v245, v244, s[60:61]")
            if i < 2: A("v_add_u32 v244, 8192, v244")
    A("k1_nocp:")
    A("s_lshl_b32 s37, s22, 7\ns_add_u32 s37, s37, s29\nv_add_u32 v244, s37, v240\nv_lshlrev_b32 v244, 1, v244")
    A("buffer_load_ushort v246, v244, s[64:67], 0 offen\nbuffer_load_ushort v247, v244, s[64:67], 0 offen offset:8")
    slot_adv = [('raw', f"s_add_u32 s30, s30, {SLOT}\ns_cmp_eq_u32 s30, {SLOT*NS}\ns_cselect_b32 s30, 0, s30\ns_cselect_b32 s29, {-SLOT*(NS-1)}, s43"),
                ('raw', "v_add_u32 v4, s29, v4"), ('raw', "v_add_u32 v5, s29, v5"), ('raw', "v_add_u32 v6, s29, v6")]
    def rdx(b, a, sub): return ('lds', f"ds_read_b128 {vr(xf(b,a))}, v{4+sub} offset:{a*512}", f"x{b}{a}")
    def rdw(u, sub):
        return [('lds', f"ds_read_b64_tr_b16 {vr(wf(u)+2*h, 2)}, v6 offset:{sub*9728 + h*1152 + u*32}", f"w{u}") for h in range(2)]
    UB = cfg.get("ub", 4)
    def pass_body(ps):
        body = []
        def mf(a, u, b):
            X, W = vr(xf(b, a)), vr(wf(u)); C = vr(acc(a, u + 9 * ps))
            a_, b_ = (X, W) if ps == 0 else (W, X)
            return ('use', f"v_mfma_f32_16x16x32_bf16 {C}, {a_}, {b_}, {C}", [f"x{b}{a}", f"w{u}"])
        pend = [rdx(1, 0, 1), rdx(1, 1, 1)]
        for sub in range(2):
            for u in range(9):
                if sub == 1 and u == UB:
                    assert not pend
                    body.append(('wait0', "s_barrier"))
                    for uu in range(UB): pend += rdw(uu, 0)
                    pend = pend[:2] + [rdx(0, 0, 0), rdx(0, 1, 0)] + pend[2:]
                for a in range(2):
                    body.append(mf(a, u, sub))
                    for _ in range(2):
                        if pend: body.append(pend.pop(0))
                if sub == 0: pend += rdw(u, 1)
                elif u >= UB: pend += rdw(u, 0)
                if sub == 1 and u == 0: pend += slot_adv
        body += pend
        return body
    A("s_barrier")
    stamp(1)
    A(f"s_setprio {cfg.get('prio_mm', 1)}")
    for a in range(2): A(rdx(0, a, 0)[1])
    for u in range(9):
        for it in rdw(u, 0): A(it[1])
    A("s_waitcnt lgkmcnt(0)")
    A("k1_loop0:")
    for l in sched(pass_body(0)): A(l)
    A("s_add_u32 s31, s31, 1\ns_cmp_lt_u32 s31, 9\ns_cbranch_scc1 k1_loop0")
    A(f"buffer_load_dword v243, off, s[48:51], 0 {SC}\ns_nop 3")
    stamp(2)
    CV = 236; T = 228; S1 = 204; S2 = 212; G = 204
    A(f"v_mov_b32 v{CV}, s42\nv_mov_b32 v{CV+1}, s42")
    for jf in range(9):
        for l in gelu_ops([acc(0, jf), acc(0, jf) + 2, acc(1, jf), acc(1, jf) + 2], T, CV): A(l)
        for a in range(2):
            for h in range(2):
                x = acc(a, jf) + 2 * h; s1 = S1 + 4 * a + 2 * h; s2 = S2 + 4 * a + 2 * h
                if jf == 0: A(f"v_mov_b64 v[{s1}:{s1+1}], v[{x}:{x+1}]\nv_pk_mul_f32 v[{s2}:{s2+1}], v[{x}:{x+1}], v[{x}:{x+1}]")
                else: A(f"v_pk_add_f32 v[{s1}:{s1+1}], v[{s1}:{s1+1}], v[{x}:{x+1}]\nv_pk_fma_f32 v[{s2}:{s2+1}], v[{x}:{x+1}], v[{x}:{x+1}], v[{s2}:{s2+1}]")
    A("s_nop 1")
    V = S1
    for k in range(8): A(f"v_add_f32_dpp v{V+k}, v{V+k}, v{V+k} row_ror:8 row_mask:0xf bank_mask:0x3")
    for k in range(8): A(f"v_add_f32_dpp v{V+k}, v{V+k+8}, v{V+k+8} row_ror:8 row_mask:0xf bank_mask:0xc")
    for k in range(4): A(f"v_add_f32_dpp v{V+8+k}, v{V+k}, v{V+k} row_half_mirror row_mask:0xf bank_mask:0x5")
    for k in range(4): A(f"v_add_f32_dpp v{V+8+k}, v{V+k+4}, v{V+k+4} row_half_mirror row_mask:0xf bank_mask:0xa")
    A("s_nop 1")
    for k in range(4): A(f"v_add_f32_dpp v{V+8+k}, v{V+8+k}, v{V+8+k} quad_perm:[1,0,3,2] row_mask:0xf bank_mask:0xf")
    A("s_nop 0")
    for k in range(4): A(f"v_add_f32_dpp v{V+8+k}, v{V+8+k}, v{V+8+k} quad_perm:[2,3,0,1] row_mask:0xf bank_mask:0xf")
    A(f"v_and_b32 v248, 3, v1\nv_cmp_eq_u32 vcc, 1, v248\nv_cmp_eq_u32 s[44:45], 2, v248\nv_cmp_eq_u32 s[46:47], 3, v248\ns_nop 1")
    A(f"v_cndmask_b32 v250, v{V+8}, v{V+9}, vcc\nv_cndmask_b32 v250, v250, v{V+10}, s[44:45]\nv_cndmask_b32 v250, v250, v{V+11}, s[46:47]")
    A(f"s_mov_b32 s73, 0\ns_branch non_c\nnon_a:\ns_sleep {SL}\nbuffer_load_dword v243, off, s[48:51], 0 {SC}\nnon_c:")
    A(f"s_waitcnt vmcnt(0)\nv_readfirstlane_b32 s72, v243\ns_add_u32 s73, s73, 1\ns_nop 3\ns_cmp_lg_u32 s72, 0\ns_cbranch_scc1 nok_a\ns_cmp_lt_u32 s73, {SPIN_MAX}\ns_cbranch_scc1 non_a\nnok_a:")
    srd(A, 32, P_WS, 64 * 8192, WS_PS)
    A("v_mov_b32 v251, s72\nv_lshlrev_b32 v244, 3, v1")
    A("s_lshl_b32 s36, s22, 2\ns_add_u32 s36, s36, s27\ns_lshl_b32 s36, s36, 13\ns_lshl_b32 s37, s23, 9\ns_add_u32 s37, s37, s36\ns_add_u32 s38, s36, 4096")
    A(f"buffer_store_dwordx2 v[250:251], v244, s[32:35], s37 offen {SC}")
    stamp(3)
    def stat_loads():
        for p in range(16):
            A(f"buffer_load_dwordx2 v[{G+2*p}:{G+2*p+1}], v244, s[32:35], s{36 if p < 8 else 38} offen offset:{(p%8)*512} {SC}")
    n1, n2, n3 = cfg.get("brk", [2, 4, 6])
    if ts: A("s_waitcnt lgkmcnt(0)")
    A(f"s_mov_b32 s31, 0\ns_mov_b32 s25, {n1}")
    A("k1_loop1:")
    for l in sched(pass_body(1)): A(l)
    A("s_add_u32 s31, s31, 1\ns_cmp_lg_u32 s31, s25\ns_cbranch_scc1 k1_loop1")
    A(f"s_cmp_eq_u32 s31, {n2}\ns_cbranch_scc1 brk2\ns_cmp_eq_u32 s31, {n3}\ns_cbranch_scc1 brk3\ns_cmp_eq_u32 s31, 9\ns_cbranch_scc1 brk9")
    stat_loads()
    A(f"s_mov_b32 s25, {n2}\ns_branch k1_loop1")
    A("brk2:\ns_mov_b32 s73, 0\ns_branch st_chk")
    A(f"st_again:\ns_sleep {SL}")
    stat_loads()
    A("st_chk:\ns_waitcnt vmcnt(0)")
    A(f"v_min_u32 v248, v{G+1}, v{G+3}\nv_max_u32 v249, v{G+1}, v{G+3}")
    for p in range(2, 16, 2):
        A(f"v_min3_u32 v248, v248, v{G+2*p+1}, v{G+2*p+3}\nv_max3_u32 v249, v249, v{G+2*p+1}, v{G+2*p+3}")
    A("v_cmp_ne_u32 vcc, s72, v248\nv_cmp_ne_u32 s[44:45], s72, v249\ns_add_u32 s73, s73, 1\ns_nop 3\ns_or_b64 vcc, vcc, s[44:45]")
    A(f"s_cbranch_scc0 st_ok\ns_cmp_lt_u32 s73, {SPIN_MAX}\ns_cbranch_scc1 st_again\nst_ok:")
    stamp(4)
    for p in range(0, 16, 4):
        A(f"v_add_f32 v{G+2*p}, v{G+2*p}, v{G+2*p+2}\nv_add_f32 v{G+2*p+4}, v{G+2*p+4}, v{G+2*p+6}")
    for p in range(0, 16, 4): A(f"v_add_f32 v{G+2*p}, v{G+2*p}, v{G+2*p+4}")
    A(f"v_add_f32 v{G}, v{G}, v{G+8}\nv_add_f32 v{G+16}, v{G+16}, v{G+24}\nv_add_f32 v248, v{G}, v{G+16}")
    A(f"s_mov_b32 s44, {f32bits(1.0/2304):#x}\ns_mov_b32 s45, {f32bits(1e-5):#x}\nv_mul_f32 v248, s44, v248\ns_nop 1")
    A("v_mov_b32_dpp v249, v248 row_ror:8 row_mask:0xf bank_mask:0xf")
    A("v_fma_f32 v249, -v248, v248, v249\nv_max_f32 v249, 0, v249\nv_add_f32 v249, s45, v249\nv_rsq_f32 v249, v249\ns_nop 0\nv_mul_f32 v248, v248, v249\ns_nop 1")
    for r in range(8):
        A(f"v_mov_b32_dpp v{S2+r}, v249 row_newbcast:{r} row_mask:0xf bank_mask:0xf\nv_mov_b32_dpp v{S1+r}, v248 row_newbcast:{r} row_mask:0xf bank_mask:0xf")
    srd(A, 32, P_WS, ZBYTES, WS_Z2)
    A(f"s_lshl_b32 s36, s23, 6\ns_lshl_b32 s37, s22, 2\ns_add_u32 s36, s36, s37\ns_add_u32 s36, s36, s27\ns_lshl_b32 s38, s36, {FS}\ns_mul_i32 s36, s36, 9216")
    for jf in range(9):
        for a in range(2):
            for h in range(2):
                x = acc(a, jf) + 2 * h; s1 = S1 + 4 * a + 2 * h; s2 = S2 + 4 * a + 2 * h
                A(f"v_pk_fma_f32 v[{x}:{x+1}], v[{x}:{x+1}], v[{s2}:{s2+1}], v[{s1}:{s1+1}] neg_lo:[0,0,1] neg_hi:[0,0,1]")
        P = 220 + (jf % 4) * 4
        a0, a1 = acc(0, jf), acc(1, jf)
        A(f"v_cvt_pk_bf16_f32 v{P}, v{a0}, v{a0+1}\nv_cvt_pk_bf16_f32 v{P+1}, v{a0+2}, v{a0+3}")
        A(f"v_cvt_pk_bf16_f32 v{P+2}, v{a1}, v{a1+1}\nv_cvt_pk_bf16_f32 v{P+3}, v{a1+2}, v{a1+3}")
        A(f"buffer_store_dwordx4 {vr(P)}, v7, s[32:35], s36 offen offset:{(jf%4)*1024} {SC}")
        if jf % 4 == 3: A("s_add_u32 s36, s36, 4096")
    srd(A, 64, P_WS, 0x40000, WS_FL)
    A("v_mov_b32 v243, s72")
    if ts: A("s_waitcnt lgkmcnt(0)")
    A(f"s_mov_b32 s25, {n3}\ns_branch k1_loop1")
    A("brk3:")
    A(f"s_waitcnt vmcnt(0)\ns_mov_b64 exec, 1\nbuffer_store_dword v243, off, s[64:67], s38 {SC}\ns_mov_b64 exec, -1")
    stamp(5)
    if ts: A("s_waitcnt lgkmcnt(0)")
    A("s_mov_b32 s25, 9\ns_branch k1_loop1")
    A("brk9:")
    stamp(9)
    Z1P = 204; CV = 168; T = 172
    A("v_lshlrev_b32 v246, 16, v246\nv_lshlrev_b32 v247, 16, v247")
    for it in range(2):
        for r in range(36): A(f"v_mov_b32 v{acc(it,0)+r}, v{246+it}")
    A(f"s_waitcnt lgkmcnt(0)\nv_mov_b32 v{CV}, s42\nv_mov_b32 v{CV+1}, s42")
    for jf in range(9):
        u = 9 + jf
        for l in gelu_ops([acc(0, u), acc(0, u) + 2, acc(1, u), acc(1, u) + 2], T, CV): A(l)
        a0, a1 = acc(0, u), acc(1, u); P = Z1P + 4 * jf
        A(f"v_cvt_pk_bf16_f32 v{P}, v{a0}, v{a0+1}\nv_cvt_pk_bf16_f32 v{P+1}, v{a0+2}, v{a0+3}")
        A(f"v_cvt_pk_bf16_f32 v{P+2}, v{a1}, v{a1+1}\nv_cvt_pk_bf16_f32 v{P+3}, v{a1+2}, v{a1+3}")
    A(f"s_mov_b32 s31, 0\ns_add_u32 s29, s30, {WOFF}\nv_add_u32 v6, s29, v7")
    PS = cfg.get("pollsync", 2)
    ZF = 80
    zf = lambda b, jf: ZF + (b * 9 + jf) * 4
    def rdw2(b, it, sub): return ('lds', f"ds_read_b128 {vr(xf(b,it))}, v{4+sub} offset:{it*512}", f"w{b}{it}")
    def rdz2(b, jf, sub): return ('lds', f"ds_read_b128 {vr(zf(b,jf))}, v6 offset:{(sub*9+jf)*1024}", f"z{b}{jf}")
    def mf2(it, jf, b): return ('use', f"v_mfma_f32_16x16x32_bf16 {vr(acc(it,jf))}, {vr(zf(b,jf))}, {vr(xf(b,it))}, {vr(acc(it,jf))}", [f"w{b}{it}", f"z{b}{jf}"])
    def reads2(b, sub): return [rdw2(b, 0, sub), rdw2(b, 1, sub)] + [rdz2(b, jf, sub) for jf in range(9)]
    A("s_barrier")
    stamp(6)
    A(f"s_setprio {cfg.get('prio_mm', 1)}")
    for it in reads2(0, 0): A(it[1])
    A("s_waitcnt lgkmcnt(0)")
    body = []
    body += interleave([mf2(it, jf, 0) for jf in range(9) for it in range(2)], reads2(1, 1) + slot_adv)
    body += [('wait0', "s_barrier")]
    body += interleave([mf2(it, jf, 1) for jf in range(9) for it in range(2)], reads2(0, 0) + [('raw', "s_add_u32 s31, s31, 1\ns_cmp_lt_u32 s31, 32")])
    body += [('raw', "s_cbranch_scc1 k2_loop")]
    A("k2_loop:")
    for l in sched(body): A(l)
    stamp(7)
    srd(A, 32, P_WS, ZBYTES, WS_H)
    A("s_lshl_b32 s36, s22, 3\ns_lshl_b32 s37, s27, 1\ns_add_u32 s36, s36, s37\ns_lshl_b32 s36, s36, 4\ns_add_u32 s36, s36, s23\ns_mul_i32 s36, s36, 4608")
    A("s_add_u32 s37, s36, 4096\nv_lshlrev_b32 v6, 3, v1\ns_setprio 0")
    T2 = 168
    n = 0
    for it in range(2):
        for jf in range(9):
            z = Z1P + 4 * jf + 2 * it; a = acc(it, jf); t = T2 + (jf % 2) * 4
            A(f"v_lshlrev_b32 v{t}, 16, v{z}\nv_and_b32 v{t+1}, 0xffff0000, v{z}\nv_lshlrev_b32 v{t+2}, 16, v{z+1}\nv_and_b32 v{t+3}, 0xffff0000, v{z+1}")
            A(f"v_pk_mul_f32 v[{a}:{a+1}], v[{a}:{a+1}], v[{t}:{t+1}]\nv_pk_mul_f32 v[{a+2}:{a+3}], v[{a+2}:{a+3}], v[{t+2}:{t+3}]")
            P = 184 + (n % 4) * 4 + (jf % 2) * 2
            A(f"v_cvt_pk_bf16_f32 v{P}, v{a}, v{a+1}\nv_cvt_pk_bf16_f32 v{P+1}, v{a+2}, v{a+3}")
            if jf % 2 == 1:
                A(f"buffer_store_dwordx4 {vr(P-2)}, v7, s[32:35], s36 offen offset:{(jf//2)*1024} {SC}"); n += 1
            elif jf == 8:
                A(f"buffer_store_dwordx2 {vr(P,2)}, v6, s[32:35], s37 offen {SC}"); n += 1
        if it == 0: A(f"s_add_u32 s36, s36, {16*4608}\ns_add_u32 s37, s37, {16*4608}")
    A("s_waitcnt lgkmcnt(0)\ns_barrier")
    A(f"s_lshl_b32 s36, s22, 2\ns_add_u32 s36, s36, s27\ns_lshl_b32 s36, s36, 4\ns_add_u32 s36, s36, s23\ns_lshl_b32 s36, s36, {FS}\ns_add_u32 s36, s36, 0x20000")
    def g3_tile():
        A("s_and_b32 s58, s20, 1\ns_lshl_b32 s55, s58, 2\ns_add_u32 s55, s55, s52\ns_mul_i32 s55, s55, 30\ns_add_u32 s55, s55, s21")
        A("s_cmp_ge_u32 s21, 30\ns_cselect_b32 s55, 255, s55\ns_lshl_b32 s58, s58, 1\ns_lshl_b32 s59, s52, 2\ns_add_u32 s58, s58, s59")
        A(f"s_mul_i32 s56, s55, {(65536+8)//9}\ns_lshr_b32 s56, s56, 16\ns_mul_i32 s57, s56, 9\ns_sub_u32 s57, s55, s57")
    g3_tile()
    ACC3 = 16; HF = 40; WF3 = 136
    acc3 = lambda t_: ACC3 + 4 * t_
    hf = lambda p, t_: HF + (p * 5 + t_) * 4 if p < 4 else HF + 80 + t_ * 2
    wf3 = lambda p: WF3 + 4 * p
    A("v_lshrrev_b32 v4, 2, v2\nv_lshl_add_u32 v4, v3, 2, v4")
    A("v_lshrrev_b32 v5, 1, v4\nv_and_b32 v5, 3, v5\nv_xor_b32 v5, s27, v5\nv_lshlrev_b32 v5, 5, v5")
    A(f"v_lshl_add_u32 v4, v4, 7, v5\nv_and_b32 v5, 3, v1\nv_lshl_add_u32 v4, v5, 3, v4\nv_add_u32 v14, {G3_A}, v4")
    A("v_mov_b32 v12, v7\nv_mov_b32 v13, v6")
    for r in range(ACC3, ACC3 + 20, 2): A(f"v_mov_b64 v[{r}:{r+1}], 0")
    A("s_mul_i32 s38, s56, 5\ns_lshr_b32 s38, s38, 1\nv_add_u32 v8, s38, v5\nv_lshrrev_b32 v9, 2, v1\nv_add_u32 v9, s58, v9\nv_and_b32 v9, 15, v9")
    A(f"v_cmp_gt_u32 s[60:61], 64, v8\nv_cmp_gt_u32 vcc, 3, v5\nv_lshl_add_u32 v8, v8, 4, v9\nv_lshlrev_b32 v8, {FS}, v8\ns_nop 1\ns_and_b64 s[60:61], s[60:61], vcc")
    A(f"s_mov_b32 s30, 0\ns_mov_b32 s31, 0\ns_mov_b32 s43, {G3_SLOT}\ns_mov_b32 s38, 0x20000")
    A(f"s_waitcnt vmcnt(0)\ns_mov_b64 exec, 1\nbuffer_store_dword v243, off, s[64:67], s36 {SC}\ns_mov_b64 exec, -1")
    stamp(8)
    A("s_cmp_ge_u32 s55, 234\ns_cbranch_scc1 k3_skip")
    A(f"s_cmp_eq_u32 s27, 0\ns_cselect_b32 s62, 0, 16\ns_mov_b32 s63, {cfg.get('hfirst', 3)}\ns_mov_b32 s73, 0")
    def hgate(tag):
        A(f"s_cmp_ge_u32 s62, 16\ns_cbranch_scc1 hg_done{tag}")
        if tag == "0": A(f"buffer_load_dword v9, v8, s[64:67], s38 offen {PA}")
        A(f"s_branch hg_chk{tag}\nhg_again{tag}:\ns_sleep {SL}\nbuffer_load_dword v9, v8, s[64:67], s38 offen {PA}\nhg_chk{tag}:")
        A("s_waitcnt vmcnt(0)\nv_cmp_ne_u32 vcc, s72, v9\ns_add_u32 s73, s73, 1\ns_nop 3\ns_and_b64 vcc, vcc, s[60:61]\ns_ff1_i32_b64 s62, vcc\ns_lshr_b32 s62, s62, 2")
        A(f"s_cmp_ge_u32 s73, {SPIN_MAX}\ns_cselect_b32 s62, 16, s62\ns_cmp_lt_u32 s62, s63\ns_cbranch_scc1 hg_again{tag}")
        A(f"s_cmp_ge_u32 s62, 16\ns_cbranch_scc1 hg_done{tag}\nbuffer_load_dword v9, v8, s[64:67], s38 offen {PA}\nhg_done{tag}:")
    if PS >= 1: A("s_waitcnt vmcnt(0)")
    if PS >= 2: A("s_barrier")
    for _ in range(cfg.get("hdelay", 0)): A("s_sleep 8")
    hgate("0")
    A("s_waitcnt lgkmcnt(0)\ns_barrier")
    body = [('raw', "s_barrier")]
    rd = []
    for p in range(5):
        if p < 4:
            for h in range(2): rd.append(('lds', f"ds_read_b64_tr_b16 {vr(wf3(p)+2*h,2)}, v14 offset:{(32*p+16*h)*128}", f"w{p}"))
            for t_ in range(5): rd.append(('lds', f"ds_read_b128 {vr(hf(p,t_))}, v12 offset:{t_*4608+p*1024}", f"h{p}{t_}"))
        else:
            rd.append(('lds', f"ds_read_b64_tr_b16 {vr(wf3(4),2)}, v14 offset:{128*128}", "w4"))
            for t_ in range(5): rd.append(('lds', f"ds_read_b64 {vr(hf(4,t_),2)}, v13 offset:{t_*4608+4096}", f"h4{t_}"))
    ms = []
    for p in range(5):
        for t_ in range(5):
            if p < 4: ms.append(('use', f"v_mfma_f32_16x16x32_bf16 {vr(acc3(t_))}, {vr(wf3(p))}, {vr(hf(p,t_))}, {vr(acc3(t_))}", [f"w{p}", f"h{p}{t_}"]))
            else: ms.append(('use', f"v_mfma_f32_16x16x16_bf16 {vr(acc3(t_))}, {vr(wf3(4),2)}, {vr(hf(4,t_),2)}, {vr(acc3(t_))}", ["w4", f"h4{t_}"]))
    body += rd[:14]
    upd = [('raw', f"s_add_u32 s30, s30, {G3_SLOT}\ns_cmp_eq_u32 s30, {G3_SLOT*G3_NS}\ns_cselect_b32 s30, 0, s30\ns_cselect_b32 s29, {-G3_SLOT*(G3_NS-1)}, s43"),
           ('raw', "v_add_u32 v12, s29, v12"), ('raw', "v_add_u32 v13, s29, v13"), ('raw', "v_add_u32 v14, s29, v14"),
           ('raw', "s_add_u32 s31, s31, 1\ns_add_u32 s63, s31, 3\ns_min_u32 s63, s63, 16")]
    body += interleave(ms, rd[14:] + upd, per=2)
    A("k3_loop:")
    for l in sched(body): A(l)
    hgate("1")
    A("s_cmp_lt_u32 s31, 16\ns_cbranch_scc1 k3_loop")
    srd(A, 32, P_OUT, 2048 * 576 * 2)
    A("s_movk_i32 s36, 1152\nv_mul_lo_u32 v4, v240, s36")
    A("s_lshl_b32 s36, s57, 7\ns_lshl_b32 s37, s27, 5\ns_add_u32 s36, s36, s37\nv_lshl_add_u32 v4, v3, 3, v4\nv_add_u32 v4, s36, v4\ns_mul_i32 s38, s56, 5")
    for t_ in range(5):
        a = acc3(t_); P = 40 + 2 * t_
        A(f"s_add_u32 s36, s38, {t_}\ns_and_b32 s37, s36, 1\ns_lshr_b32 s36, s36, 1\ns_lshl_b32 s36, s36, 3\ns_add_u32 s36, s36, s37\ns_mul_i32 s36, s36, {4*1152}")
        A(f"v_cvt_pk_bf16_f32 v{P}, v{a}, v{a+1}\nv_cvt_pk_bf16_f32 v{P+1}, v{a+2}, v{a+3}")
        A(f"buffer_store_dwordx2 {vr(P,2)}, v4, s[32:35], s36 offen {cfg.get('out_st','')}")
    A("k3_skip:")
    flush(0, 11, 0)
    if ts and cfg.get("spin") is not None:
        col = cfg["spin"]
        A("s_cmp_lg_u32 s2, 0\ns_cbranch_scc1 k3_nospin\ns_cmp_lg_u32 s26, 0\ns_cbranch_scc1 k3_nospin")
        A(f"s_mov_b32 s61, s{80+2*col}\ns_mov_b32 s64, 0")
        A("k3_spin:\ns_memrealtime s[62:63]\ns_waitcnt lgkmcnt(0)\ns_add_u32 s64, s64, 1\ns_cmp_gt_u32 s64, 0x100000\ns_cbranch_scc1 k3_nospin\ns_sub_u32 s62, s62, s61\ns_cmp_lt_u32 s62, 10000\ns_cbranch_scc1 k3_spin")
        A("k3_nospin:")
    A("s_endpgm")
    A("k_loader:")
    A(f"s_setprio {cfg.get('prio_ld', 0)}")
    rot = cfg.get("k1_rot", 3)
    if rot == 1: A("s_lshl_b32 s55, s54, 1\ns_add_u32 s55, s55, s53\ns_cmp_ge_u32 s55, 9\ns_cselect_b32 s56, 9, 0\ns_sub_u32 s55, s55, s56")
    elif rot == 3: A("s_add_u32 s55, s53, s54\ns_mul_i32 s56, s55, 11\ns_lshr_b32 s56, s56, 5\ns_mul_i32 s56, s56, 3\ns_sub_u32 s55, s55, s56\ns_mul_i32 s55, s55, 3")
    elif rot == 2: A("s_add_u32 s55, s53, s54\ns_and_b32 s55, s55, 1\ns_mul_i32 s55, s55, 5")
    elif rot == 4: A("s_and_b32 s55, s20, 1\ns_lshl_b32 s55, s55, 2\ns_add_u32 s55, s55, s52")
    else: A("s_mov_b32 s55, 0")
    A(f"s_lshl_b32 s36, s55, 7\ns_mul_i32 s37, s55, {64*9216}")
    A("v_lshrrev_b32 v4, 3, v1\nv_and_b32 v5, 7, v1")
    A("s_lshl_b32 s28, s22, 7\ns_lshl_b32 s29, s27, 5\ns_add_u32 s28, s28, s29")
    A("s_movk_i32 s29, 1152\nv_add_u32 v13, s28, v4\nv_mul_lo_u32 v6, v13, s29")
    A("v_and_b32 v8, 1, v3\nv_xor_b32 v8, v8, v5")
    for j in range(4): A(f"v_xor_b32 v9, {2*j}, v8\nv_lshl_add_u32 v9, v9, 4, v6\nv_add_u32 v{16+j}, {j*(8*1152-1024)}, v9")
    A("s_lshl_b32 s28, s27, 12\ns_mov_b32 m0, s28\ns_mov_b32 s30, 0")
    A("s_waitcnt lgkmcnt(0)")
    srd(A, 32, P_X, 2048 * 576 * 2)
    srd(A, 64, P_WIN, 576 * 4608 * 2)
    for j in range(4): A(f"buffer_load_dwordx4 v{16+j}, s[32:35], s36 offen offset:{j*1024} lds")
    A(f"s_mov_b32 s29, {(2**32 + 151)//152:#x}\ns_mov_b32 s38, {(2**32 + 17)//18:#x}\ns_mul_i32 s39, s23, 288\ns_add_u32 s39, s39, 4608")
    A(f"s_mul_i32 s57, s27, 5120\ns_add_u32 s57, s57, {WOFF}\ns_mul_i32 s58, s27, 320\ns_movk_i32 s59, 9216\ns_movk_i32 s56, 144")
    A("v_mov_b32 v12, 0x7f000000")
    for j in range(5):
        A(f"v_add_u32 v9, {64*j}, v1\nv_add_u32 v9, s58, v9\nv_mul_hi_u32 v10, v9, s29")
        A("v_mul_u32_u24 v11, 152, v10\nv_sub_u32 v9, v9, v11\nv_mul_hi_u32 v11, v9, s38")
        A("v_cmp_gt_u32 vcc, s56, v9\nv_lshl_add_u32 v10, v10, 3, v11\nv_mul_u32_u24 v11, 18, v11\nv_sub_u32 v9, v9, v11")
        A(f"v_mul_lo_u32 v11, v10, s59\nv_lshl_add_u32 v9, v9, 4, v11\ns_sub_u32 s60, s39, {(j%4)*1024}\nv_add_u32 v9, s60, v9")
        A(f"v_cndmask_b32 v9, v12, v9, vcc\nv_cmp_gt_u32 vcc, 64, v10\ns_nop 1\nv_cndmask_b32 v{24+j}, v12, v9, vcc")
        if j % 4 == 0: A(f"s_add_u32 m0, s57, {j*1024}\ns_nop 0")
        A(f"buffer_load_dwordx4 v{24+j}, s[64:67], s37 offen offset:{(j%4)*1024} lds")
    A("s_mov_b32 s29, s57")
    def issueA(slot, so, ax=""):
        A(f"s_add_u32 m0, s{slot}, s28\ns_nop 0")
        for j in range(4): A(f"buffer_load_dwordx4 v{16+j}, s[32:35], s{so} offen offset:{j*1024} {ax} lds")
    def issueB(slot, so, ax="", n=5):
        A(f"s_add_u32 s39, s{slot}, s29")
        for j in range(n):
            if j % 4 == 0: A(f"s_add_u32 m0, s39, {j*1024}\ns_nop 0")
            A(f"buffer_load_dwordx4 v{24+j}, s[64:67], s{so} offen offset:{(j%4)*1024} {ax} lds")
    def slot_next(reg=30): A(f"s_add_u32 s{reg}, s{reg}, {SLOT}\ns_cmp_eq_u32 s{reg}, {SLOT*NS}\ns_cselect_b32 s{reg}, 0, s{reg}")
    def adv1():
        A(f"s_add_u32 s36, s36, 128\ns_add_u32 s37, s37, {64*9216}\ns_cmp_eq_u32 s36, {9*128}\ns_cselect_b32 s36, 0, s36\ns_cselect_b32 s37, 0, s37")
        slot_next()
    adv1()
    issueA(30, 36); issueB(30, 37); adv1()
    A("s_mov_b32 s31, 2")
    A("k1_lloop:")
    issueA(30, 36); issueB(30, 37); adv1()
    A("s_waitcnt vmcnt(18)\ns_barrier")
    A("s_add_u32 s31, s31, 1\ns_cmp_lg_u32 s31, 9\ns_cbranch_scc1 k1_lsame")
    for j in range(5): A(f"v_subrev_u32 v{24+j}, 4608, v{24+j}")
    A("k1_lsame:")
    A("s_cmp_lt_u32 s31, 18\ns_cbranch_scc1 k1_lloop")
    A("v_lshlrev_b32 v6, 12, v13")
    for j in range(4): A(f"v_xor_b32 v9, {2*j}, v8\nv_lshl_add_u32 v9, v9, 4, v6\nv_add_u32 v{16+j}, {j*(8*4096-1024)}, v9")
    A(f"s_mul_i32 s38, s23, {32*18432}\ns_mul_i32 s39, s27, 5120\ns_add_u32 s38, s38, s39\nv_lshlrev_b32 v9, 4, v1\nv_add_u32 v9, s38, v9")
    A("s_cmp_eq_u32 s27, 3\ns_cselect_b64 vcc, -1, 0")
    for j in range(5):
        if j < 3: A(f"v_mov_b32 v{24+j}, v9")
        elif j == 3: A(f"v_cndmask_b32 v{24+j}, v9, v12, vcc")
        else: A(f"v_add_u32 v9, 4096, v9\nv_cndmask_b32 v{24+j}, v9, v12, vcc")
    srd(A, 32, P_WSP, 2048 * 2048 * 2)
    srd(A, 64, P_WS, ZBYTES, WS_Z2)
    srd(A, 48, P_DBG, 256)
    srd(A, 68, P_WS, 0x40000, WS_FL)
    A(f"s_lshl_b32 s36, s52, 10\ns_mul_i32 s37, s52, {8*18432}")
    def advW(): A("s_add_u32 s36, s36, 128\ns_and_b32 s36, s36, 4095")
    def advZ(): A(f"s_add_u32 s37, s37, 18432\ns_cmp_eq_u32 s37, {32*18432}\ns_cselect_b32 s37, 0, s37")
    A(f"buffer_load_dword v11, off, s[48:51], 0 {SC}")
    issueA(30, 36); advW(); slot_next()
    A("s_waitcnt vmcnt(14)\ns_barrier")
    issueA(30, 36); advW(); slot_next()
    A("s_waitcnt vmcnt(9)\ns_barrier")
    issueA(30, 36); advW(); slot_next()
    A("s_barrier")
    stamp(1)
    A(f"s_lshl_b32 s38, s23, {6+FS}\nv_lshlrev_b32 v10, {FS}, v1\ns_mov_b32 s73, 0")
    A(f"s_branch kz_poll\nkz_again:\ns_sleep {SL}\nbuffer_load_dword v11, off, s[48:51], 0 {SC}\nkz_poll:\nbuffer_load_dword v9, v10, s[68:71], s38 offen {PA}")
    A(f"s_waitcnt vmcnt(0)\nv_cmp_ne_u32 vcc, v11, v9\nv_cmp_eq_u32 s[44:45], 0, v11\ns_add_u32 s73, s73, 1\ns_nop 3\ns_or_b64 vcc, vcc, s[44:45]\ns_cbranch_scc0 kz_ok\ns_cmp_lt_u32 s73, {SPIN_MAX}\ns_cbranch_scc1 kz_again")
    A("kz_ok:")
    stamp(2)
    issueA(30, 36); advW(); slot_next()
    for i in range(4): issueB(30, 37, haux); advZ(); slot_next()
    A("s_waitcnt vmcnt(15)\ns_barrier")
    A("s_waitcnt vmcnt(10)\ns_barrier")
    issueA(30, 36); issueB(30, 37, haux); advW(); advZ(); slot_next()
    A("s_waitcnt vmcnt(14)\ns_barrier")
    A("s_mov_b32 s31, 5")
    A("k2_lloop:")
    issueA(30, 36); issueB(30, 37, haux); advW(); advZ(); slot_next()
    A("s_waitcnt vmcnt(18)\ns_barrier")
    A("s_add_u32 s31, s31, 1\ns_cmp_lt_u32 s31, 32\ns_cbranch_scc1 k2_lloop")
    g3_tile()
    A("s_mul_i32 s28, s27, 384")
    A(f"s_mov_b32 s29, {(2**32 + 287)//288:#x}\ns_mov_b32 s36, {16*4608}\ns_mul_i32 s37, s56, {5*16*4608}\ns_movk_i32 s38, 288\ns_movk_i32 s39, 1440")
    for j in range(6):
        A(f"v_add_u32 v6, {64*j}, v1\nv_add_u32 v6, s28, v6\nv_mul_hi_u32 v7, v6, s29\nv_mul_lo_u32 v8, v7, s38\nv_sub_u32 v8, v6, v8")
        A("v_mul_lo_u32 v7, v7, s36\nv_lshl_add_u32 v7, v8, 4, v7\nv_add_u32 v7, s37, v7")
        A(f"v_cmp_gt_u32 vcc, s39, v6\nv_subrev_u32 v7, {(j%4)*1024}, v7\ns_nop 0\nv_cndmask_b32 v{16+j}, v12, v7, vcc")
    A("s_waitcnt vmcnt(9)\ns_barrier")
    A("v_and_b32 v6, 6, v4\nv_xor_b32 v6, v5, v6\nv_lshlrev_b32 v6, 4, v6")
    A("s_mul_i32 s28, s27, 40\nv_add_u32 v7, s28, v4\ns_movk_i32 s28, 1152\nv_mul_lo_u32 v7, v7, s28\nv_add_u32 v7, v7, v6\ns_lshl_b32 s28, s57, 7\nv_add_u32 v7, s28, v7")
    A("s_cmp_eq_u32 s27, 3\ns_cselect_b64 vcc, -1, 0")
    for j in range(5):
        A(f"v_add_u32 v{24+j}, {j*8*1152 - (j%4)*1024}, v7")
        if j >= 3: A(f"v_cndmask_b32 v{24+j}, v{24+j}, v12, vcc")
    srd(A, 32, P_WS, ZBYTES, WS_H)
    srd(A, 64, P_WO, 2304 * 576 * 2)
    A(f"s_mul_i32 s28, s27, 6144\ns_mul_i32 s29, s27, 5120\ns_add_u32 s29, s29, {G3_A}")
    A("s_waitcnt vmcnt(0)\ns_barrier\ns_barrier\ns_barrier")
    stamp(3)
    A("s_cmp_ge_u32 s55, 234\ns_cbranch_scc1 kl_done")
    def slot3(reg): A(f"s_add_u32 s{reg}, s{reg}, {G3_SLOT}\ns_cmp_eq_u32 s{reg}, {G3_SLOT*G3_NS}\ns_cselect_b32 s{reg}, 0, s{reg}")
    def issueH(slot):
        A(f"s_add_u32 s38, s{slot}, s28")
        for j in range(6):
            if j % 4 == 0: A(f"s_add_u32 m0, s38, {j*1024}\ns_nop 0")
            A(f"buffer_load_dwordx4 v{16+j}, s[32:35], s36 offen offset:{(j%4)*1024} {haux} lds")
        A(f"s_add_u32 s36, s36, 4608\ns_cmp_eq_u32 s36, {16*4608}\ns_cselect_b32 s36, 0, s36")
    def issueO(slot):
        issueB(slot, 37); A(f"s_add_u32 s37, s37, {144*1152}\ns_cmp_eq_u32 s37, {16*144*1152}\ns_cselect_b32 s37, 0, s37")
    A(f"s_mov_b32 s30, 0\ns_mul_i32 s36, s58, 4608\ns_mul_i32 s37, s58, {144*1152}")
    for i in range(3): issueO(30); slot3(30)
    if PS >= 2: A("s_barrier")
    A("s_barrier")
    stamp(4)
    for i in range(3): issueH(30); slot3(30)
    A("s_waitcnt vmcnt(12)\ns_barrier")
    stamp(5)
    A("s_waitcnt vmcnt(6)\ns_barrier")
    A("s_mov_b32 s31, 3")
    A("k3_lloop:")
    issueO(30); issueH(30); slot3(30)
    A("s_waitcnt vmcnt(11)\ns_barrier")
    A("s_add_u32 s31, s31, 1\ns_cmp_lt_u32 s31, 16\ns_cbranch_scc1 k3_lloop")
    A("s_waitcnt vmcnt(0)\ns_barrier")
    A("kl_done:")
    flush(2, 7, 4)
    A("k_end:\ns_endpgm")
    A(".p2align 8\ntext_pad:\n.fill 2560, 4, 0xBF810000")

    head = open("standalone__mixer_gmlp__prompt.s.ref").read().split("\n")
    head = [l for l in head if l.startswith(";") and "@launch" not in l]
    hdr = "\n".join(head) + "\n"
    if cfg.get("aslist"): hdr += f"; @launch kernel={NAME} grid=(256,1,1) block=(512,1,1) lds={LDS_BYTES}\n"
    else: hdr += f"; @launch grid=(256,1,1) block=(512,1,1) lds={LDS_BYTES}\n"
    hdr += '.amdgcn_target "amdgcn-amd-amdhsa--gfx950"\n.text\n'
    tail = f""".section .rodata,"a"
.p2align 6
.amdhsa_kernel {NAME}
  .amdhsa_next_free_vgpr 256
  .amdhsa_next_free_sgpr 102
  .amdhsa_accum_offset 256
  .amdhsa_group_segment_fixed_size 0
  .amdhsa_kernarg_size 64
  .amdhsa_user_sgpr_count 2
  .amdhsa_user_sgpr_kernarg_segment_ptr 1
  .amdhsa_system_sgpr_workgroup_id_x 1
.end_amdhsa_kernel
"""
    return hdr + A.text() + tail

if __name__ == "__main__":
    import json
    cfg = json.loads(sys.argv[2]) if len(sys.argv) > 2 else {}
    out = sys.argv[1] if len(sys.argv) > 1 else "standalone__mixer_gmlp__prompt.s"
    open(out, "w").write(build(cfg))
```
